```python
import torch

def _softmax(x, axis=-1):
    return torch.softmax(x, dim=axis)

def _gelu(x):
    return torch.nn.functional.gelu(x, approximate='tanh')

def _silu(x):
    return torch.nn.functional.silu(x)

def _sigmoid(x):
    return torch.sigmoid(x)

def _layernorm(x, axis=-1, eps=1e-05):
    m = x.mean(dim=axis, keepdim=True)
    v = x.var(dim=axis, keepdim=True, unbiased=False)
    return (x - m) / torch.sqrt(v + eps)

def _scatter_add(tgt, idx, src, axis=0):
    return tgt.clone().index_add_(axis, idx, src)

def _segment_sum(src, seg, n):
    out = torch.zeros((n,) + src.shape[1:], dtype=src.dtype)
    return out.index_add_(0, seg, src)

def _pad(x, pw):
    flat = tuple((v for pair in reversed(pw) for v in pair))
    return torch.nn.functional.pad(x, flat)
kernel_name = 'concat_heads__memory_aug_recurrent_mem_tr__sliding_local_dilated__prompt'

def setup_inputs():

    _w = lambda a: (lambda t: t.to(torch.bfloat16) if t.is_floating_point() else t)(torch.as_tensor(a))

    def _A_setup():
        B, S, Dm = (1, 2048, 640)
        H, Dh = (32, 128)
        M, seg = (8, 32)
        seg = min(seg, S)
        S = S // seg * seg
        return {'x': _w((lambda *s: torch.randn(*s, dtype=torch.bfloat16) * 0.05)(B, S, Dm)), 'mem0': _w((lambda *s: torch.randn(*s, dtype=torch.bfloat16) * 1.6)(B, M, Dm)), 'Wq': _w((lambda *s: torch.randn(*s, dtype=torch.bfloat16) * 0.8)(Dm, H, Dh) * Dm ** (-0.5)), 'Wk': _w((lambda *s: torch.randn(*s, dtype=torch.bfloat16) * 0.8)(Dm, H, Dh) * Dm ** (-0.5)), 'Wv': _w((lambda *s: torch.randn(*s, dtype=torch.bfloat16) * 1.6)(Dm, H, Dh) * Dm ** (-0.5)), 'Wo': _w((lambda *s: torch.randn(*s, dtype=torch.bfloat16) * 1.6)(H, Dh, Dm) * (H * Dh) ** (-0.5)), 'seg_len': seg}
    _A_in = _A_setup()

    def _B_setup():
        B, S, D = (1, 2048, 640)
        return {'x': _w((lambda *s: torch.randn(*s, dtype=torch.bfloat16) * 0.2)(B, S, D)), 'wqkv': _w((lambda *s: torch.randn(*s, dtype=torch.bfloat16) * 0.2)(D, 3 * D)), 'wo': _w((lambda *s: torch.randn(*s, dtype=torch.bfloat16) * 0.05)(D, D))}
    _B_in = _B_setup()
    return {'A_x': _A_in['x'], 'A_mem0': _A_in['mem0'], 'A_Wq': _A_in['Wq'], 'A_Wk': _A_in['Wk'], 'A_Wv': _A_in['Wv'], 'A_Wo': _A_in['Wo'], 'A_seg_len': _A_in['seg_len'], 'B_x': _B_in['x'], 'B_wqkv': _B_in['wqkv'], 'B_wo': _B_in['wo']}

def reference(A_x, A_mem0, A_Wq, A_Wk, A_Wv, A_Wo, A_seg_len, B_x, B_wqkv, B_wo):

    def _A_ref(x, mem0, Wq, Wk, Wv, Wo, seg_len):
        B, S, Dm = x.shape
        H, Dh = (Wq.shape[1], Wq.shape[2])
        M = mem0.shape[1]
        scale = Dh ** (-0.5)
        n_seg = S // seg_len
        L = M + seg_len
        idx = torch.arange(L)
        mask = (idx[:, None] < M) | (idx[:, None] >= idx[None, :])
        mem = mem0
        outs = []
        for s in range(n_seg):
            xs = x[:, s * seg_len:(s + 1) * seg_len, :].clone()
            h = torch.concatenate([mem, xs], axis=1)
            q = torch.einsum('btd,dhe->bhte', h, Wq)
            k = torch.einsum('btd,dhe->bhte', h, Wk)
            v = torch.einsum('btd,dhe->bhte', h, Wv)
            scores = torch.einsum('bhqe,bhke->bhqk', q, k) * scale
            scores = torch.where(mask[None, None], scores, -1000000000.0)
            p = _softmax(scores, axis=-1)
            o = torch.einsum('bhqk,bhke->bhqe', p, v)
            o = torch.einsum('bhte,hed->btd', o, Wo)
            mem = o[:, :M, :].clone()
            outs.append(o[:, M:, :])
        return torch.concatenate(outs, axis=1)

    def _B_ref(x, wqkv, wo):
        B, S, D = x.shape
        H = 32
        Dh = D // H
        W, dil = (8, 2)
        qkv = (lambda x, *d: x.permute(*d))((x @ wqkv).reshape(B, S, 3, H, Dh), 2, 0, 3, 1, 4)
        q, k, v = (qkv[0], qkv[1], qkv[2])
        scale = Dh ** (-0.5)
        pos = torch.arange(S)
        off = torch.arange(W) * dil
        idx = pos[:, None] - off[None, :]
        mask = idx >= 0
        idx_c = torch.where(mask, idx, 0).reshape(-1)
        kg = k[:, :, idx_c, :].reshape(B, H, S, W, Dh)
        vg = v[:, :, idx_c, :].reshape(B, H, S, W, Dh)
        logits = torch.einsum('bhsd,bhswd->bhsw', q, kg) * scale
        logits = torch.where(mask[None, None, :, :], logits, -1000000000.0)
        attn = _softmax(logits, axis=-1)
        o = torch.einsum('bhsw,bhswd->bhsd', attn, vg)
        return (lambda x, *d: x.permute(*d))(o, 0, 2, 1, 3).reshape(B, S, D) @ wo
    a = _A_ref(A_x, A_mem0, A_Wq, A_Wk, A_Wv, A_Wo, A_seg_len)
    b = _B_ref(B_x, B_wqkv, B_wo)
    return torch.concatenate([a, b], axis=-1)
```

```python
WOL, WOL_LD = 0, 144
MEML, MEML_LD = 92160, 1296
QL, QL_LD = 112896, 272
KL = 117248
VL, VL_LD = 130304, 80
OL, OL_LD = 135424, 144
RED = 137728
LDS_BYTES = 139776
NCH, NRED = 64, 80
SPIN_MAX = 1 << 21


def wreg(tile, ks):
    if tile < 3:
        b = tile * 80 + ks * 4
        return f"a[{b}:{b+3}]"
    if tile == 3:
        if ks < 4:
            b = 240 + ks * 4
            return f"a[{b}:{b+3}]"
        b = 112 + (ks - 4) * 4
        return f"v[{b}:{b+3}]"
    b = 176 + ks * 4
    return f"v[{b}:{b+3}]"


def v_div(a, dst, src, d, maxv, G):
    m, sh = G.magic_div(d, maxv)
    a(f"s_mov_b32 s90, {m}")
    a(f"v_mul_lo_u32 {dst}, {src}, s90")
    a(f"v_lshrrev_b32 {dst}, {sh}, {dst}")


def xlane_reduce(a, op, x, t1, t2):
    a(f"v_mov_b32 {t1}, {x}")
    a(f"v_mov_b32 {t2}, {x}")
    a("s_nop 1")
    a(f"v_permlane16_swap_b32 {t1}, {t2}")
    a("s_nop 1")
    a(f"{op} {x}, {t1}, {t2}")
    a(f"v_mov_b32 {t1}, {x}")
    a(f"v_mov_b32 {t2}, {x}")
    a("s_nop 1")
    a(f"v_permlane32_swap_b32 {t1}, {t2}")
    a("s_nop 1")
    a(f"{op} {x}, {t1}, {t2}")


def round_bf16_pair(a, r0, r1, t):
    a(f"v_cvt_pk_bf16_f32 {t}, {r0}, {r1}")
    a(f"v_lshlrev_b32 {r0}, 16, {t}")
    a(f"v_and_b32 {r1}, 0xffff0000, {t}")


def gen_chain(a, G):
    label = "k2_chain_kernel"
    G.kernel_begin(a, label)
    a(f"""
    s_cmp_ge_u32 s2, {NCH + NRED}
    s_cbranch_scc1 .k2_end
    s_load_dwordx2 s[4:5], s[0:1], {G.ARG['ws']}
    s_load_dwordx2 s[6:7], s[0:1], {G.ARG['mem0']}
    v_lshrrev_b32 v1, 6, v0
    s_nop 1
    v_readfirstlane_b32 s18, v1
    v_and_b32 v1, 63, v0
    v_and_b32 v2, 15, v1
    v_lshrrev_b32 v3, 4, v1
    s_waitcnt lgkmcnt(0)
    """)
    G.srd(a, 8, 4, G.WS_BYTES)
    G.srd(a, 12, 6, G.ARG_BYTES['mem0'])
    a(f"""
    s_cmp_ge_u32 s2, {NCH}
    s_cbranch_scc1 .k2_reducer
    s_lshr_b32 s16, s2, 1
    s_and_b32 s17, s2, 1
    s_mov_b32 s22, 0x00ff00ff
    s_mov_b32 s23, 0x00ff00ff
    s_mov_b32 s24, 0xffffffff
    s_mov_b32 s25, 0
    s_mov_b32 s26, 0x07060302
    s_mov_b32 s51, 4096
    s_mov_b32 s52, 8192
    s_mov_b32 s53, 12288
    s_mov_b32 s54, 16384
    """)
    a("""
    s_lshl_b32 s28, s16, 7
    s_lshl_b32 s29, s18, 5
    s_add_u32 s28, s28, s29
    v_add_u32 v4, s28, v2
    v_mul_u32_u24 v4, 1280, v4
    v_lshlrev_b32 v5, 4, v3
    v_add_u32 v4, v4, v5
    """)
    a(f"v_add_u32 v4, {G.WS_WT}, v4")
    a(f"v_add_u32 v5, {16*1280}, v4")
    a(f"v_add_u32 v6, {4096*1280}, v4")
    a(f"v_add_u32 v7, {(4096+16)*1280}, v4")
    a("""
    s_lshl_b32 s28, s16, 7
    s_lshl_b32 s29, s17, 6
    s_add_u32 s28, s28, s29
    s_lshl_b32 s29, s18, 4
    s_add_u32 s28, s28, s29
    v_add_u32 v8, s28, v2
    v_mul_u32_u24 v8, 1280, v8
    v_lshlrev_b32 v9, 4, v3
    v_add_u32 v8, v8, v9
    """)
    a(f"v_add_u32 v8, {G.WS_WT + 8192*1280}, v8")
    for t in range(5):
        for ks in range(20):
            a(f"buffer_load_dwordx4 {wreg(t, ks)}, v{4+t}, s[8:11], 0 offen offset:{ks*64}")
        if t % 2 == 1:
            a("s_waitcnt vmcnt(0)")
    a(f"""
    v_lshrrev_b32 v4, 3, v0
    v_and_b32 v5, 7, v0
    v_lshlrev_b32 v6, 13, v4
    v_lshlrev_b32 v7, 4, v5
    v_add_u32 v6, v6, v7
    s_lshl_b32 s28, s16, 8
    s_lshl_b32 s29, s17, 7
    s_add_u32 s28, s28, s29
    s_add_u32 s28, s28, {G.WS_WOT}
    v_add_u32 v6, s28, v6
    v_mul_u32_u24 v8, {WOL_LD}, v4
    v_add_u32 v8, v8, v7
    s_mov_b32 s28, 0
    """)
    for n in range(20):
        a(f"buffer_load_dwordx4 v[{16+4*n}:{19+4*n}], v6, s[8:11], s28 offen")
        a("s_add_u32 s28, s28, 0x40000")
    a("s_waitcnt vmcnt(0)")
    for n in range(20):
        if n == 10:
            a(f"v_add_u32 v8, {10*32*WOL_LD}, v8")
        a(f"ds_write_b128 v8, v[{16+4*n}:{19+4*n}] offset:{WOL + (n%10)*32*WOL_LD}")
    a(f"""
    v_mov_b32 v16, 0
    v_mov_b32 v17, 0
    v_mov_b32 v18, 0
    v_mov_b32 v19, 0
    v_lshlrev_b32 v4, 4, v0
    v_add_u32 v4, {MEML + 8*MEML_LD}, v4
    ds_write_b128 v4, v[16:19]
    ds_write_b128 v4, v[16:19] offset:4096
    v_cmp_gt_u32 vcc, {648-512}, v0
    s_and_saveexec_b64 s[30:31], vcc
    ds_write_b128 v4, v[16:19] offset:8192
    s_mov_b64 exec, s[30:31]
    """)
    a(f"""
    v_mul_u32_u24 v4, {MEML_LD}, v2
    v_lshlrev_b32 v26, 4, v3
    v_add_u32 v4, v4, v26
    v_add_u32 v4, {MEML}, v4
    v_lshlrev_b32 v5, 4, v0
    v_add_u32 v5, {G.WS_EX3}, v5
    """)
    for n in range(5):
        a(f"v_add_u32 v27, {n*256}, v0")
        v_div(a, "v28", "v27", 160, 1280, G)
        a("v_mul_u32_u24 v29, 160, v28")
        a("v_sub_u32 v29, v27, v29")
        a(f"v_mul_u32_u24 v28, {MEML_LD}, v28")
        a("v_lshlrev_b32 v29, 3, v29")
        a(f"v_add_u32 v{6+n}, v28, v29")
        a(f"v_add_u32 v{6+n}, {MEML}, v{6+n}")
    a(f"""
    v_mul_u32_u24 v27, {QL_LD}, v2
    v_lshlrev_b32 v28, 3, v3
    s_lshl_b32 s28, s18, 6
    v_add_u32 v29, v27, v28
    v_add_u32 v29, s28, v29
    v_add_u32 v11, {QL}, v29
    v_add_u32 v12, {KL + 32*QL_LD}, v29
    v_add_u32 v13, v27, v26
    v_add_u32 v14, {KL}, v13
    v_add_u32 v13, {QL}, v13
    s_lshl_b32 s28, s18, 4
    v_add_u32 v15, s28, v2
    v_mul_u32_u24 v15, {VL_LD}, v15
    v_add_u32 v15, v15, v28
    v_add_u32 v15, {VL}, v15
    v_mul_u32_u24 v27, {OL_LD}, v2
    s_lshl_b32 s28, s18, 5
    v_add_u32 v16, v27, v28
    v_add_u32 v16, s28, v16
    v_add_u32 v16, {OL}, v16
    v_add_u32 v17, v27, v26
    v_add_u32 v17, {OL}, v17
    s_mul_i32 s28, s18, 160
    v_add_u32 v18, s28, v2
    v_mul_u32_u24 v18, {WOL_LD}, v18
    v_add_u32 v18, v18, v26
    """)
    a(f"""
    v_lshrrev_b32 v27, 1, v3
    s_mul_i32 s28, s18, 20
    v_add_u32 v27, s28, v27
    v_lshlrev_b32 v27, 6, v27
    v_add_u32 v27, s2, v27
    v_lshlrev_b32 v27, 9, v27
    v_lshlrev_b32 v28, 6, v2
    v_add_u32 v27, v27, v28
    v_and_b32 v28, 1, v3
    v_lshlrev_b32 v28, 5, v28
    v_add_u32 v27, v27, v28
    v_add_u32 v19, {G.WS_EX2}, v27
    """)
    a(f"""
    v_lshrrev_b32 v27, 4, v0
    v_and_b32 v28, 15, v0
    v_lshlrev_b32 v28, 4, v28
    v_lshlrev_b32 v20, 14, v27
    v_add_u32 v20, v20, v28
    s_lshl_b32 s28, s16, 8
    s_add_u32 s28, s28, {G.WS_QK + 8192}
    v_add_u32 v20, s28, v20
    v_mul_u32_u24 v21, {QL_LD}, v27
    v_add_u32 v21, v21, v28
    v_add_u32 v21, {KL}, v21
    v_lshrrev_b32 v27, 2, v0
    v_and_b32 v28, 3, v0
    v_lshlrev_b32 v28, 4, v28
    s_lshl_b32 s28, s16, 7
    s_lshl_b32 s29, s17, 6
    s_add_u32 s28, s28, s29
    v_add_u32 v22, s28, v27
    v_lshlrev_b32 v22, 12, v22
    v_add_u32 v22, v22, v28
    v_add_u32 v22, {G.WS_VT}, v22
    v_mul_u32_u24 v23, {VL_LD}, v27
    v_add_u32 v23, v23, v28
    v_add_u32 v23, {VL}, v23
    """)
    a(f"""
    s_lshl_b32 s28, s16, 3
    v_add_u32 v24, s28, v2
    v_lshlrev_b32 v24, 8, v24
    v_lshlrev_b32 v27, 3, v3
    v_add_u32 v24, v24, v27
    s_lshl_b32 s28, s18, 6
    s_add_u32 s28, s28, {G.WS_KM}
    v_add_u32 v24, s28, v24
    s_lshl_b32 s28, s16, 7
    s_lshl_b32 s29, s17, 6
    s_add_u32 s28, s28, s29
    s_lshl_b32 s29, s18, 4
    s_add_u32 s28, s28, s29
    v_add_u32 v25, s28, v2
    v_lshlrev_b32 v25, 4, v25
    v_add_u32 v25, v25, v27
    v_add_u32 v25, {G.WS_VMT}, v25
    """)
    a("v_lshlrev_b32 v27, 3, v0")
    for n in range(5):
        a(f"buffer_load_dwordx2 v[{68+2*n}:{69+2*n}], v27, s[12:15], {'0' if n < 2 else 's%d' % (50 + (n >> 1))} offen offset:{(n&1)*2048}")
    a("""
    s_mov_b32 s28, 0x40000
    buffer_load_dwordx4 v[28:31], v20, s[8:11], 0 offen
    buffer_load_dwordx4 v[32:35], v20, s[8:11], s28 offen
    buffer_load_dwordx4 v[36:39], v22, s[8:11], 0 offen
    s_waitcnt vmcnt(0)
    """)
    for n in range(5):
        a(f"ds_write_b64 v{6+n}, v[{68+2*n}:{69+2*n}]")
    a(f"""
    ds_write_b128 v21, v[28:31]
    ds_write_b128 v21, v[32:35] offset:{16*QL_LD}
    ds_write_b128 v23, v[36:39]
    s_mov_b32 s19, 0
    s_mov_b32 s40, 0x3fb8aa3b
    s_mov_b32 s41, 0x3db504f3
    """)
    a.label(".k2_step")
    a("""
    s_waitcnt lgkmcnt(0)
    s_barrier
    """)
    a("""
    s_add_u32 s28, s19, 1
    s_min_u32 s28, s28, 63
    s_lshl_b32 s29, s28, 19
    s_add_u32 s30, s29, 0x40000
    s_lshl_b32 s31, s28, 6
    buffer_load_dwordx4 v[28:31], v20, s[8:11], s29 offen
    buffer_load_dwordx4 v[32:35], v20, s[8:11], s30 offen
    buffer_load_dwordx4 v[36:39], v22, s[8:11], s31 offen
    """)
    for ks in range(4):
        a(f"ds_read_b128 v[{60+4*ks}:{63+4*ks}], v4 offset:{ks*64}")
    for ks in range(20):
        b = 60 + 4 * (ks % 4)
        rem = min(3, 19 - ks)
        a(f"s_waitcnt lgkmcnt({rem})")
        for t in range(5):
            c = 40 + 4 * t
            cin = "0" if ks == 0 else f"v[{c}:{c+3}]"
            if t < 4:
                a(f"v_mfma_f32_16x16x32_bf16 v[{c}:{c+3}], {wreg(t, ks)}, v[{b}:{b+3}], {cin}")
            else:
                a(f"v_mfma_f32_16x16x32_bf16 v[{c}:{c+3}], v[{b}:{b+3}], {wreg(t, ks)}, {cin}")
        if ks + 4 < 20:
            a(f"ds_read_b128 v[{b}:{b+3}], v4 offset:{(ks+4)*64}")
    a("s_nop 7")
    a("s_nop 7")
    for t in range(4):
        c = 40 + 4 * t
        a(f"v_cvt_pk_bf16_f32 v{60+2*t}, v{c}, v{c+1}")
        a(f"v_cvt_pk_bf16_f32 v{61+2*t}, v{c+2}, v{c+3}")
    a("v_cvt_pk_bf16_f32 v26, v56, v57")
    a("v_cvt_pk_bf16_f32 v27, v58, v59")
    a("""
    ds_write_b64 v11, v[60:61]
    ds_write_b64 v11, v[62:63] offset:32
    ds_write_b64 v12, v[64:65]
    ds_write_b64 v12, v[66:67] offset:32
    s_lshl_b32 s29, s19, 16
    s_mov_b64 exec, s[24:25]
    buffer_store_dwordx2 v[26:27], v25, s[8:11], s29 offen
    s_mov_b64 exec, s[22:23]
    s_cmp_eq_u32 s17, 0
    s_cbranch_scc0 .k2_nokm
    buffer_store_dwordx2 v[64:65], v24, s[8:11], s29 offen
    buffer_store_dwordx2 v[66:67], v24, s[8:11], s29 offen offset:32
    """)
    a.label(".k2_nokm")
    a("""
    s_mov_b64 exec, -1
    s_cmp_eq_u32 s19, 63
    s_cbranch_scc1 .k2_fin
    s_waitcnt lgkmcnt(0)
    s_barrier
    """)
    for ks in range(4):
        a(f"ds_read_b128 v[{60+4*ks}:{63+4*ks}], v13 offset:{ks*64}")
    for ks in range(4):
        a(f"ds_read_b128 v[{40+4*ks}:{43+4*ks}], v14 offset:{ks*64}")
    for ks in range(4):
        a(f"ds_read_b128 v[{76+4*ks}:{79+4*ks}], v14 offset:{16*QL_LD + ks*64}")
    a(f"ds_read_b64 v[92:93], v15")
    a(f"ds_read_b64 v[94:95], v15 offset:32")
    a("s_waitcnt lgkmcnt(6)")
    for ks in range(4):
        cin = "0" if ks == 0 else "v[100:103]"
        a(f"v_mfma_f32_16x16x32_bf16 v[100:103], v[{40+4*ks}:{43+4*ks}], v[{60+4*ks}:{63+4*ks}], {cin}")
    for ks in range(4):
        a(f"ds_read_b128 v[{40+4*ks}:{43+4*ks}], v14 offset:{32*QL_LD + ks*64}")
    a("s_waitcnt lgkmcnt(6)")
    for ks in range(4):
        cin = "0" if ks == 0 else "v[104:107]"
        a(f"v_mfma_f32_16x16x32_bf16 v[104:107], v[{76+4*ks}:{79+4*ks}], v[{60+4*ks}:{63+4*ks}], {cin}")
    a("s_waitcnt lgkmcnt(0)")
    for ks in range(4):
        cin = "0" if ks == 0 else "v[108:111]"
        a(f"v_mfma_f32_16x16x32_bf16 v[108:111], v[{40+4*ks}:{43+4*ks}], v[{60+4*ks}:{63+4*ks}], {cin}")
    a("s_nop 7")
    a("s_nop 7")
    for p in range(6):
        round_bf16_pair(a, f"v{100+2*p}", f"v{101+2*p}", "v40")
    for r in range(12):
        a(f"v_mul_f32 v{100+r}, s41, v{100+r}")
    for p in range(6):
        round_bf16_pair(a, f"v{100+2*p}", f"v{101+2*p}", "v40")
    a("v_mov_b32 v41, 0xf149f2ca")
    a("v_cmp_gt_u32 vcc, 2, v3")
    a("s_nop 1")
    for r in range(4):
        a(f"v_cndmask_b32 v{108+r}, v41, v{108+r}, vcc")
    a("v_max3_f32 v42, v100, v101, v102")
    for r in range(3, 11, 2):
        a(f"v_max3_f32 v42, v42, v{100+r}, v{101+r}")
    a("v_max_f32 v42, v42, v111")
    xlane_reduce(a, "v_max_f32", "v42", "v43", "v44")
    for r in range(12):
        a(f"v_sub_f32 v{100+r}, v{100+r}, v42")
    for r in range(12):
        a(f"v_mul_f32 v{100+r}, s40, v{100+r}")
    for r in range(12):
        a(f"v_exp_f32 v{100+r}, v{100+r}")
    a("s_nop 1")
    a("v_add_f32 v42, v100, v101")
    for r in range(2, 12):
        a(f"v_add_f32 v42, v42, v{100+r}")
    xlane_reduce(a, "v_add_f32", "v42", "v43", "v44")
    a("v_rcp_f32 v42, v42")
    a("s_nop 1")
    for r in range(12):
        a(f"v_mul_f32 v{100+r}, v{100+r}, v42")
    for p in range(6):
        a(f"v_cvt_pk_bf16_f32 v{44+p}, v{100+2*p}, v{101+2*p}")
    a("s_nop 1")
    a("v_mfma_f32_16x16x16_bf16 v[52:55], v[92:93], v[44:45], 0")
    a("v_mfma_f32_16x16x16_bf16 v[52:55], v[94:95], v[46:47], v[52:55]")
    a("v_mfma_f32_16x16x16_bf16 v[52:55], v[26:27], v[48:49], v[52:55]")
    for f in range(4):
        a(f"ds_read_b128 v[{76+4*f}:{79+4*f}], v18 offset:{(f>>1)*16*WOL_LD + (f&1)*64}")
    a("s_nop 7")
    a("s_nop 3")
    a("v_cvt_pk_bf16_f32 v56, v52, v53")
    a("v_cvt_pk_bf16_f32 v57, v54, v55")
    a("ds_write_b64 v16, v[56:57]")
    a("s_waitcnt lgkmcnt(0)")
    a("s_barrier")
    a(f"""
    s_waitcnt vmcnt(0)
    ds_write_b128 v21, v[28:31]
    ds_write_b128 v21, v[32:35] offset:{16*QL_LD}
    ds_write_b128 v23, v[36:39]
    ds_read_b128 v[68:71], v17
    ds_read_b128 v[72:75], v17 offset:64
    """)
    for bt in range(5):
        cur = 76 + 16 * (bt & 1)
        nxt = 76 + 16 * ((bt + 1) & 1)
        if bt < 4:
            for f in range(4):
                a(f"ds_read_b128 v[{nxt+4*f}:{nxt+3+4*f}], v18 offset:{((bt+1)*2+(f>>1))*16*WOL_LD + (f&1)*64}")
            a("s_waitcnt lgkmcnt(4)")
        else:
            a("s_waitcnt lgkmcnt(0)")
        for tl in range(2):
            c = 28 + 4 * (bt * 2 + tl)
            a(f"v_mfma_f32_16x16x32_bf16 v[{c}:{c+3}], v[{cur+8*tl}:{cur+8*tl+3}], v[68:71], 0")
            a(f"v_mfma_f32_16x16x32_bf16 v[{c}:{c+3}], v[{cur+8*tl+4}:{cur+8*tl+7}], v[72:75], v[{c}:{c+3}]")
    a("s_add_u32 s20, s19, 1")
    a("s_nop 7")
    a("s_nop 7")
    a("s_mov_b64 exec, s[22:23]")
    a("s_mov_b32 s28, 0")
    for tt in range(10):
        st = 76 + 8 * (tt & 3)
        c = 28 + 4 * tt
        for r in range(4):
            a(f"v_mov_b32 v{st+2*r}, v{c+r}")
            if tt < 4:
                a(f"v_mov_b32 v{st+2*r+1}, s20")
        a(f"buffer_store_dwordx4 v[{st}:{st+3}], v19, s[8:11], s28 offen sc1")
        a(f"buffer_store_dwordx4 v[{st+4}:{st+7}], v19, s[8:11], s28 offen offset:16 sc1")
        a("s_add_u32 s28, s28, 0x10000")
    a("s_mov_b64 exec, -1")
    a("s_mov_b32 s21, 0")
    a.label(".k2_poll")
    for n in range(5):
        a(f"buffer_load_dwordx4 v[{68+4*n}:{71+4*n}], v5, s[8:11], 0 offen offset:{0} sc1" if n == 0 else
          f"buffer_load_dwordx4 v[{68+4*n}:{71+4*n}], v5, s[8:11], s{50+n} offen sc1")
    a("s_waitcnt vmcnt(0)")
    a("v_xor_b32 v40, s20, v68")
    for r in range(1, 20):
        a(f"v_xor_b32 v41, s20, v{68+r}")
        a("v_or_b32 v40, v40, v41")
    a("v_and_b32 v40, 0xffff, v40")
    a("v_cmp_ne_u32 vcc, 0, v40")
    a("s_cbranch_vccz .k2_got")
    a("s_add_u32 s21, s21, 1")
    a(f"s_cmp_lt_u32 s21, {SPIN_MAX}")
    a("s_cbranch_scc1 .k2_poll")
    a("s_endpgm")
    a.label(".k2_got")
    for n in range(5):
        b = 68 + 4 * n
        a(f"v_perm_b32 v{40+2*n}, v{b+1}, v{b}, s26")
        a(f"v_perm_b32 v{41+2*n}, v{b+3}, v{b+2}, s26")
        a(f"ds_write_b64 v{6+n}, v[{40+2*n}:{41+2*n}]")
    a("s_add_u32 s19, s19, 1")
    a("s_branch .k2_step")
    a.label(".k2_fin")
    a("s_waitcnt vmcnt(0)")
    a("s_endpgm")

    a.label(".k2_reducer")
    a(f"""
    s_sub_u32 s16, s2, {NCH}
    s_lshl_b32 s28, s16, 15
    s_add_u32 s28, s28, {G.WS_EX2}
    v_lshlrev_b32 v4, 4, v1
    s_lshl_b32 s29, s18, 13
    s_add_u32 s28, s28, s29
    v_add_u32 v4, s28, v4
    v_lshlrev_b32 v5, 3, v1
    s_lshl_b32 s29, s18, 8
    v_add_u32 v5, s29, v5
    v_add_u32 v5, {RED}, v5
    v_and_b32 v6, 31, v1
    v_lshlrev_b32 v6, 3, v6
    v_add_u32 v6, {RED}, v6
    v_lshrrev_b32 v7, 2, v1
    v_mul_u32_u24 v7, 2560, v7
    v_and_b32 v8, 3, v1
    v_lshlrev_b32 v8, 3, v8
    v_add_u32 v7, v7, v8
    s_lshl_b32 s29, s16, 5
    s_add_u32 s29, s29, {G.WS_EX3}
    v_add_u32 v7, s29, v7
    s_mov_b32 s24, 0xffffffff
    s_mov_b32 s25, 0
    s_mov_b32 s20, 1
    s_mov_b32 s51, 4096
    """)
    a.label(".k2_rstep")
    a("s_mov_b32 s21, 0")
    a.label(".k2_rpoll")
    for n in range(8):
        a(f"buffer_load_dwordx4 v[{16+4*n}:{19+4*n}], v4, s[8:11], {'0' if n < 4 else 's51'} offen offset:{(n&3)*1024} sc1")
    a("s_waitcnt vmcnt(0)")
    a("v_xor_b32 v10, s20, v17")
    for n in range(8):
        for q in (1, 3):
            if n == 0 and q == 1:
                continue
            a(f"v_xor_b32 v11, s20, v{16+4*n+q}")
            a("v_or_b32 v10, v10, v11")
    a("v_cmp_ne_u32 vcc, 0, v10")
    a("s_cbranch_vccz .k2_rgot")
    a("s_add_u32 s21, s21, 1")
    a(f"s_cmp_lt_u32 s21, {SPIN_MAX}")
    a("s_cbranch_scc1 .k2_rpoll")
    a("s_endpgm")
    a.label(".k2_rgot")
    a("v_add_f32 v10, v16, v20")
    a("v_add_f32 v11, v18, v22")
    for n in range(2, 8):
        a(f"v_add_f32 v10, v10, v{16+4*n}")
        a(f"v_add_f32 v11, v11, v{18+4*n}")
    for x in ("v10", "v11"):
        a(f"v_mov_b32 v12, {x}")
        a(f"v_mov_b32 v13, {x}")
        a("s_nop 1")
        a("v_permlane32_swap_b32 v12, v13")
        a("s_nop 1")
        a(f"v_add_f32 {x}, v12, v13")
    a("""
    s_mov_b64 exec, s[24:25]
    ds_write_b64 v5, v[10:11]
    s_mov_b64 exec, -1
    s_waitcnt lgkmcnt(0)
    s_barrier
    s_cmp_eq_u32 s18, 0
    s_cbranch_scc0 .k2_rnext
    ds_read_b64 v[16:17], v6
    ds_read_b64 v[18:19], v6 offset:256
    ds_read_b64 v[20:21], v6 offset:512
    ds_read_b64 v[22:23], v6 offset:768
    s_waitcnt lgkmcnt(0)
    v_add_f32 v10, v16, v18
    v_add_f32 v11, v17, v19
    v_add_f32 v10, v10, v20
    v_add_f32 v11, v11, v21
    v_add_f32 v10, v10, v22
    v_add_f32 v11, v11, v23
    v_cvt_pk_bf16_f32 v12, v10, v11
    v_lshlrev_b32 v10, 16, v12
    v_and_b32 v11, 0xffff0000, v12
    v_or_b32 v10, s20, v10
    v_or_b32 v11, s20, v11
    s_mov_b64 exec, s[24:25]
    buffer_store_dwordx2 v[10:11], v7, s[8:11], 0 offen sc1
    s_mov_b64 exec, -1
    """)
    a.label(".k2_rnext")
    a("""
    s_add_u32 s20, s20, 1
    s_cmp_le_u32 s20, 63
    s_cbranch_scc1 .k2_rstep
    s_waitcnt vmcnt(0)
    """)
    a.label(".k2_end")
    a("s_endpgm")
    G.KERNELS.append((label, 256, 256))
    G.LAUNCHES.append((label, NCH + NRED, 256, LDS_BYTES))


def gen_all(a, G):
    gen_chain(a, G)


def gen_k3(a, G):
    label = "k3_attn_kernel"
    NA, NB = 512, 256
    G.kernel_begin(a, label)
    a(f"""
    s_cmp_ge_u32 s2, {NA + NB}
    s_cbranch_scc1 .k3_end
    s_load_dwordx2 s[4:5], s[0:1], {G.ARG['ws']}
    v_lshrrev_b32 v1, 6, v0
    s_nop 1
    v_readfirstlane_b32 s18, v1
    v_and_b32 v1, 63, v0
    s_waitcnt lgkmcnt(0)
    """)
    G.srd(a, 8, 4, G.WS_BYTES)
    a(f"""
    s_mov_b32 s40, 0x3fb8aa3b
    s_cmp_ge_u32 s2, {NA}
    s_cbranch_scc1 .k3_b
    s_lshl_b32 s16, s2, 2
    s_add_u32 s16, s16, s18
    s_and_b32 s17, s16, 31
    s_lshr_b32 s16, s16, 5
    s_mov_b32 s41, 0x3db504f3
    v_and_b32 v2, 31, v1
    v_lshrrev_b32 v3, 5, v1
    """)
    a(f"""
    s_lshl_b32 s28, s16, 19
    s_lshl_b32 s29, s17, 8
    s_add_u32 s28, s28, s29
    s_add_u32 s28, s28, {G.WS_QK}
    v_lshlrev_b32 v4, 14, v2
    v_lshlrev_b32 v5, 5, v3
    v_add_u32 v4, v4, v5
    v_add_u32 v4, s28, v4
    v_add_u32 v6, 0x2000, v4
    s_lshl_b32 s28, s16, 16
    s_lshl_b32 s29, s17, 11
    s_add_u32 s28, s28, s29
    s_add_u32 s28, s28, {G.WS_KM}
    v_and_b32 v7, 7, v2
    v_lshlrev_b32 v7, 8, v7
    v_add_u32 v7, v7, v5
    v_add_u32 v7, s28, v7
    """)
    for kb in range(4):
        for hf in range(2):
            o = kb * 64 + hf * 16
            i = kb * 2 + hf
            a(f"buffer_load_dwordx4 v[{16+4*i}:{19+4*i}], v4, s[8:11], 0 offen offset:{o}")
            a(f"buffer_load_dwordx4 v[{48+4*i}:{51+4*i}], v6, s[8:11], 0 offen offset:{o}")
            a(f"buffer_load_dwordx4 v[{80+4*i}:{83+4*i}], v7, s[8:11], 0 offen offset:{o}")
    a(f"""
    s_lshl_b32 s28, s17, 19
    s_lshl_b32 s29, s16, 6
    s_add_u32 s28, s28, s29
    s_add_u32 s28, s28, {G.WS_VT}
    v_lshlrev_b32 v8, 12, v2
    v_lshlrev_b32 v5, 3, v3
    v_add_u32 v8, v8, v5
    v_add_u32 v8, s28, v8
    s_lshl_b32 s28, s16, 16
    s_lshl_b32 s29, s17, 11
    s_add_u32 s28, s28, s29
    s_add_u32 s28, s28, {G.WS_VMT}
    v_lshlrev_b32 v9, 4, v2
    v_add_u32 v9, v9, v5
    v_add_u32 v9, s28, v9
    s_mov_b32 s28, 0
    """)
    for et in range(4):
        b = 144 + 12 * et
        a(f"buffer_load_dwordx2 v[{b}:{b+1}], v8, s[8:11], s28 offen")
        a(f"buffer_load_dwordx2 v[{b+2}:{b+3}], v8, s[8:11], s28 offen offset:16")
        a(f"buffer_load_dwordx2 v[{b+4}:{b+5}], v8, s[8:11], s28 offen offset:32")
        a(f"buffer_load_dwordx2 v[{b+6}:{b+7}], v8, s[8:11], s28 offen offset:48")
        a(f"buffer_load_dwordx2 v[{b+8}:{b+9}], v9, s[8:11], 0 offen offset:{et*512}")
        a(f"v_mov_b32 v{b+10}, 0")
        a(f"v_mov_b32 v{b+11}, 0")
        a("s_add_u32 s28, s28, 0x20000")
    a("s_waitcnt vmcnt(20)")
    for i in range(8):
        cin = "0" if i == 0 else "v[112:127]"
        a(f"v_mfma_f32_32x32x16_bf16 v[112:127], v[{48+4*i}:{51+4*i}], v[{16+4*i}:{19+4*i}], {cin}")
    for i in range(8):
        cin = "0" if i == 0 else "v[128:143]"
        a(f"v_mfma_f32_32x32x16_bf16 v[128:143], v[{80+4*i}:{83+4*i}], v[{16+4*i}:{19+4*i}], {cin}")
    a("s_nop 15")
    a("s_nop 7")
    S = list(range(112, 132))
    for p in range(10):
        round_bf16_pair(a, f"v{S[2*p]}", f"v{S[2*p+1]}", "v16")
    for r in S:
        a(f"v_mul_f32 v{r}, s41, v{r}")
    for p in range(10):
        round_bf16_pair(a, f"v{S[2*p]}", f"v{S[2*p+1]}", "v16")
    a("v_mov_b32 v17, 0xf149f2ca")
    a("v_lshlrev_b32 v18, 2, v3")
    a("v_sub_u32 v18, v2, v18")
    for r in range(16):
        k0 = (r & 3) + 8 * (r >> 2)
        a(f"v_cmp_le_i32 vcc, {k0}, v18")
        a("s_nop 1")
        a(f"v_cndmask_b32 v{112+r}, v17, v{112+r}, vcc")
    a("v_max3_f32 v19, v112, v113, v114")
    for r in range(115, 131, 2):
        a(f"v_max3_f32 v19, v19, v{r}, v{r+1}")
    a("v_max_f32 v19, v19, v131")

    def x32(op, x):
        a(f"v_mov_b32 v20, {x}")
        a(f"v_mov_b32 v21, {x}")
        a("s_nop 1")
        a("v_permlane32_swap_b32 v20, v21")
        a("s_nop 1")
        a(f"{op} {x}, v20, v21")
    x32("v_max_f32", "v19")
    for r in S:
        a(f"v_sub_f32 v{r}, v{r}, v19")
    for r in S:
        a(f"v_mul_f32 v{r}, s40, v{r}")
    for r in S:
        a(f"v_exp_f32 v{r}, v{r}")
    a("s_nop 1")
    a("v_add_f32 v19, v112, v113")
    for r in S[2:]:
        a(f"v_add_f32 v19, v19, v{r}")
    x32("v_add_f32", "v19")
    a("v_rcp_f32 v19, v19")
    a("s_nop 1")
    for r in S:
        a(f"v_mul_f32 v{r}, v{r}, v19")
    for p in range(10):
        a(f"v_cvt_pk_bf16_f32 v{24+p}, v{S[2*p]}, v{S[2*p+1]}")
    a("v_mov_b32 v34, 0")
    a("v_mov_b32 v35, 0")
    a("s_waitcnt vmcnt(0)")
    a("s_nop 1")
    for et in range(4):
        b = 144 + 12 * et
        c = 48 + 16 * et
        a(f"v_mfma_f32_32x32x16_bf16 v[{c}:{c+15}], v[{b}:{b+3}], v[24:27], 0")
        a(f"v_mfma_f32_32x32x16_bf16 v[{c}:{c+15}], v[{b+4}:{b+7}], v[28:31], v[{c}:{c+15}]")
        a(f"v_mfma_f32_32x32x16_bf16 v[{c}:{c+15}], v[{b+8}:{b+11}], v[32:35], v[{c}:{c+15}]")
    a(f"""
    s_lshl_b32 s28, s16, 18
    s_lshl_b32 s29, s17, 8
    s_add_u32 s28, s28, s29
    s_add_u32 s28, s28, {G.WS_OA}
    v_lshlrev_b32 v4, 13, v2
    v_lshlrev_b32 v5, 4, v3
    v_add_u32 v4, v4, v5
    v_add_u32 v4, s28, v4
    s_nop 15
    s_nop 7
    """)
    for et in range(4):
        c = 48 + 16 * et
        p = 16 + 8 * (et & 1)
        for q in range(8):
            a(f"v_cvt_pk_bf16_f32 v{p+q}, v{c+2*q}, v{c+2*q+1}")
        a("s_nop 1")
        for pr in range(2):
            for w in range(2):
                a(f"v_permlane32_swap_b32 v{p+4*pr+w}, v{p+4*pr+2+w}")
        a("s_nop 1")
        a(f"buffer_store_dwordx4 v[{p}:{p+3}], v4, s[8:11], 0 offen offset:{et*64}")
        a(f"buffer_store_dwordx4 v[{p+4}:{p+7}], v4, s[8:11], 0 offen offset:{et*64+32}")
    a("s_waitcnt vmcnt(0)")
    a("s_endpgm")

    a.label(".k3_b")
    a(f"""
    s_sub_u32 s16, s2, {NA}
    s_lshl_b32 s16, s16, 3
    v_lshrrev_b32 v2, 5, v0
    v_add_u32 v2, s16, v2
    v_and_b32 v3, 31, v0
    v_mul_u32_u24 v3, 40, v3
    s_mov_b32 s41, 0x3e64f92e
    s_movk_i32 s28, 3840
    """)
    a("v_mul_lo_u32 v4, v2, s28")
    a("v_add_u32 v4, v4, v3")
    a(f"v_add_u32 v4, {G.WS_BQ}, v4")
    a("buffer_load_dwordx4 v[16:19], v4, s[8:11], 0 offen")
    a("buffer_load_dwordx4 v[20:23], v4, s[8:11], 0 offen offset:16")
    a("buffer_load_dwordx2 v[24:25], v4, s[8:11], 0 offen offset:32")
    for w in range(8):
        a(f"v_subrev_u32 v5, {2*w}, v2")
        a("v_max_i32 v5, 0, v5")
        a("v_mul_lo_u32 v5, v5, s28")
        a("v_add_u32 v5, v5, v3")
        a(f"v_add_u32 v5, {G.WS_BQ}, v5")
        kb, vb = 28 + 12 * w, 128 + 12 * w
        a(f"buffer_load_dwordx4 v[{kb}:{kb+3}], v5, s[8:11], 0 offen offset:1280")
        a(f"buffer_load_dwordx4 v[{kb+4}:{kb+7}], v5, s[8:11], 0 offen offset:1296")
        a(f"buffer_load_dwordx2 v[{kb+8}:{kb+9}], v5, s[8:11], 0 offen offset:1312")
        a(f"buffer_load_dwordx4 v[{vb}:{vb+3}], v5, s[8:11], 0 offen offset:2560")
        a(f"buffer_load_dwordx4 v[{vb+4}:{vb+7}], v5, s[8:11], 0 offen offset:2576")
        a(f"buffer_load_dwordx2 v[{vb+8}:{vb+9}], v5, s[8:11], 0 offen offset:2592")
    a("s_waitcnt vmcnt(0)")
    for w in range(8):
        kb = 28 + 12 * w
        a(f"v_mov_b32 v{224+w}, 0")
        for d in range(10):
            a(f"v_dot2_f32_bf16 v{224+w}, v{16+d}, v{kb+d}, v{224+w}")
    for p in range(4):
        round_bf16_pair(a, f"v{224+2*p}", f"v{225+2*p}", "v6")
    for w in range(8):
        a(f"v_mul_f32 v{224+w}, s41, v{224+w}")
    for p in range(4):
        round_bf16_pair(a, f"v{224+2*p}", f"v{225+2*p}", "v6")
    a("v_mov_b32 v7, 0xf149f2ca")
    for w in range(1, 8):
        a(f"v_cmp_le_u32 vcc, {2*w}, v2")
        a("s_nop 1")
        a(f"v_cndmask_b32 v{224+w}, v7, v{224+w}, vcc")
    a("v_max3_f32 v8, v224, v225, v226")
    a("v_max3_f32 v8, v8, v227, v228")
    a("v_max3_f32 v8, v8, v229, v230")
    a("v_max_f32 v8, v8, v231")
    for w in range(8):
        a(f"v_sub_f32 v{224+w}, v{224+w}, v8")
    for w in range(8):
        a(f"v_mul_f32 v{224+w}, s40, v{224+w}")
    for w in range(8):
        a(f"v_exp_f32 v{224+w}, v{224+w}")
    a("s_nop 1")
    a("v_add_f32 v8, v224, v225")
    for w in range(2, 8):
        a(f"v_add_f32 v8, v8, v{224+w}")
    a("v_rcp_f32 v8, v8")
    a("s_nop 1")
    for w in range(8):
        a(f"v_mul_f32 v{224+w}, v{224+w}, v8")
    for p in range(4):
        round_bf16_pair(a, f"v{224+2*p}", f"v{225+2*p}", "v6")
    for w in range(8):
        vb = 128 + 12 * w
        for d in range(10):
            a(f"v_lshlrev_b32 v6, 16, v{vb+d}")
            a(f"v_and_b32 v7, 0xffff0000, v{vb+d}")
            if w == 0:
                a(f"v_mul_f32 v{232+2*d}, v224, v6")
                a(f"v_mul_f32 v{233+2*d}, v224, v7")
            else:
                a(f"v_fma_f32 v{232+2*d}, v{224+w}, v6, v{232+2*d}")
                a(f"v_fma_f32 v{233+2*d}, v{224+w}, v7, v{233+2*d}")
    for d in range(10):
        a(f"v_cvt_pk_bf16_f32 v{16+d}, v{232+2*d}, v{233+2*d}")
    a(f"""
    v_mul_u32_u24 v4, 1280, v2
    v_add_u32 v4, v4, v3
    v_add_u32 v4, {G.WS_OB}, v4
    buffer_store_dwordx4 v[16:19], v4, s[8:11], 0 offen
    buffer_store_dwordx4 v[20:23], v4, s[8:11], 0 offen offset:16
    buffer_store_dwordx2 v[24:25], v4, s[8:11], 0 offen offset:32
    s_waitcnt vmcnt(0)
    """)
    a.label(".k3_end")
    a("s_endpgm")
    G.KERNELS.append((label, 256, 0))
    G.LAUNCHES.append((label, NA + NB, 256, 0))


def gen_all(a, G):
    gen_chain(a, G)
    gen_k3(a, G)
```

```python
import sys, re

NAME = "concat_heads__memory_aug_recurrent_mem_tr__sliding_local_dilated__prompt"

WS_WT   = 0x0000000
WS_WOT  = 0x1000000
WS_BWT  = 0x1600000
WS_BWOT = 0x1900000
WS_QK   = 0x2000000
WS_VT   = 0x4000000
WS_BQ   = 0x5000000
WS_OA   = 0x6000000
WS_OB   = 0x7000000
WS_KM   = 0x7400000
WS_VMT  = 0x7800000
WS_EX2  = 0x8000000
WS_EX3  = 0x8400000
WS_ZERO_BYTES = 0x410000
WS_BYTES = 0x10000000

ARG = dict(A_x=0, mem0=8, Wq=16, Wk=24, Wv=32, Wo=40, seg=48, B_x=56, wqkv=64, wo=72, out=80, dbg=88, ws=96)
ARG_BYTES = dict(A_x=2621440, mem0=10240, Wq=5242880, Wk=5242880, Wv=5242880, Wo=5242880,
                 B_x=2621440, wqkv=2457600, wo=819200, out=5242880, ws=WS_BYTES)


class Asm:
    def __init__(self):
        self.lines = []
        self.uid = 0

    def __call__(self, s):
        for ln in s.strip("\n").split("\n"):
            ln = ln.strip()
            if ln.startswith("buffer_") or ln.startswith("global_"):
                mo = re.search(r"offset:(\d+)", ln)
                assert not mo or int(mo.group(1)) < 4096, ln
            self.lines.append("    " + ln)

    def label(self, name):
        self.lines.append(name + ":")

    def new_label(self, base="L"):
        self.uid += 1
        return f".{base}_{self.uid}"

    def raw(self, s):
        self.lines.append(s)


def magic_div(d, maxv):
    for sh in (16, 20, 24):
        m = (1 << sh) // d + 1
        if all((t * m) >> sh == t // d for t in range(maxv)) and maxv * m < (1 << 31):
            return m, sh
    raise ValueError((d, maxv))


def s_div(a, dst, src, d, maxv):
    if d & (d - 1) == 0:
        a(f"s_lshr_b32 {dst}, {src}, {d.bit_length() - 1}")
    else:
        m, sh = magic_div(d, maxv)
        a(f"s_mul_i32 {dst}, {src}, {m}")
        a(f"s_lshr_b32 {dst}, {dst}, {sh}")


def srd(a, sd, sp, nbytes):
    a(f"s_mov_b32 s{sd}, s{sp}")
    a(f"s_mov_b32 s{sd+1}, s{sp+1}")
    a(f"s_mov_b32 s{sd+2}, {nbytes}")
    a(f"s_mov_b32 s{sd+3}, 0x00020000")


KERNELS = []
LAUNCHES = []


def kernel_begin(a, label):
    a.raw(f".globl {label}")
    a.raw(".p2align 8")
    a.raw(f".type {label},@function")
    a.label(label)


def gen_k0(a):
    label = "k0_transpose_kernel"
    jobs = [
        ("Wq", 10, 64, 8192, WS_WT, 1280, 'n'),
        ("Wk", 10, 64, 8192, WS_WT + 4096 * 1280, 1280, 'n'),
        ("Wv", 10, 64, 8192, WS_WT + 8192 * 1280, 1280, 'n'),
        ("Wo", 64, 10, 1280, WS_WOT, 8192, 'k'),
        ("wqkv", 10, 30, 3840, WS_BWT, 1280, 'n'),
        ("wo", 10, 10, 1280, WS_BWOT, 1280, 'n'),
    ]
    ntiles = sum(j[1] * j[2] for j in jobs)
    assert ntiles % 4 == 0
    nwg_t = ntiles // 4
    nwg_z = WS_ZERO_BYTES // 16384
    nwg = nwg_t + nwg_z
    kernel_begin(a, label)
    a(f"""
    s_cmp_ge_u32 s2, {nwg}
    s_cbranch_scc1 .k0_end
    s_load_dwordx2 s[4:5], s[0:1], {ARG['ws']}
    s_waitcnt lgkmcnt(0)
    """)
    srd(a, 12, 4, WS_BYTES)
    a(f"""
    s_cmp_lt_u32 s2, {nwg_t}
    s_cbranch_scc1 .k0_tr
    s_sub_u32 s3, s2, {nwg_t}
    s_lshl_b32 s3, s3, 14
    s_add_u32 s3, s3, {WS_EX2}
    v_lshlrev_b32 v1, 4, v0
    v_add_u32 v1, s3, v1
    v_mov_b32 v4, 0
    v_mov_b32 v5, 0
    v_mov_b32 v6, 0
    v_mov_b32 v7, 0
    buffer_store_dwordx4 v[4:7], v1, s[12:15], 0 offen
    v_add_u32 v1, 0x1000, v1
    buffer_store_dwordx4 v[4:7], v1, s[12:15], 0 offen
    v_add_u32 v1, 0x1000, v1
    buffer_store_dwordx4 v[4:7], v1, s[12:15], 0 offen
    v_add_u32 v1, 0x1000, v1
    buffer_store_dwordx4 v[4:7], v1, s[12:15], 0 offen
    s_waitcnt vmcnt(0)
    s_endpgm
    """)
    a.label(".k0_tr")
    a("""
    v_lshrrev_b32 v1, 6, v0
    s_nop 1
    v_readfirstlane_b32 s3, v1
    s_lshl_b32 s6, s2, 2
    s_add_u32 s6, s6, s3
    """)
    base = 0
    for i, (arg, KT, NT, sld, doff, dld, order) in enumerate(jobs):
        n = KT * NT
        nxt = f".k0_j{i+1}"
        a(f"s_cmp_ge_u32 s6, {base + n}")
        a(f"s_cbranch_scc1 {nxt}")
        a(f"s_sub_u32 s7, s6, {base}")
        a(f"s_load_dwordx2 s[8:9], s[0:1], {ARG[arg]}")
        if order == 'n':
            s_div(a, "s20", "s7", NT, n)
            a(f"s_mul_i32 s21, s20, {NT}")
            a("s_sub_u32 s21, s7, s21")
        else:
            s_div(a, "s21", "s7", KT, n)
            a(f"s_mul_i32 s20, s21, {KT}")
            a("s_sub_u32 s20, s7, s20")
        a(f"s_mov_b32 s22, {sld}")
        a(f"s_mov_b32 s23, {dld}")
        a(f"s_mov_b32 s24, {doff}")
        a(f"s_mov_b32 s25, {ARG_BYTES[arg]}")
        a("s_branch .k0_go")
        a.label(nxt)
        base += n
    a("s_endpgm")
    a.label(".k0_go")
    a("""
    s_waitcnt lgkmcnt(0)
    s_mov_b32 s16, s8
    s_mov_b32 s17, s9
    s_mov_b32 s18, s25
    s_mov_b32 s19, 0x00020000
    v_and_b32 v1, 63, v0
    v_and_b32 v2, 7, v1
    v_lshrrev_b32 v3, 3, v1
    """)
    a("""
    s_lshl_b32 s26, s20, 6
    v_lshlrev_b32 v4, 3, v3
    v_add_u32 v4, s26, v4
    v_mul_lo_u32 v5, v4, s22
    s_lshl_b32 s27, s21, 6
    v_lshlrev_b32 v6, 3, v2
    v_add_u32 v6, s27, v6
    v_lshlrev_b32 v7, 1, v6
    v_add_u32 v5, v5, v7
    v_mul_lo_u32 v8, v6, s23
    v_lshlrev_b32 v9, 1, v4
    v_add_u32 v8, v8, v9
    v_add_u32 v8, s24, v8
    """)
    for r in range(8):
        a(f"buffer_load_dwordx4 v[{16+4*r}:{19+4*r}], v5, s[16:19], 0 offen")
        if r < 7:
            a("v_add_u32 v5, s22, v5")
    a("s_mov_b32 s28, 0x05040100")
    a("s_mov_b32 s29, 0x07060302")
    a("s_waitcnt vmcnt(0)")
    for c in range(8):
        for q in range(4):
            sel = "s28" if c % 2 == 0 else "s29"
            a(f"v_perm_b32 v{48+4*c+q}, v{16+4*(2*q+1)+(c>>1)}, v{16+4*(2*q)+(c>>1)}, {sel}")
    for c in range(8):
        a(f"buffer_store_dwordx4 v[{48+4*c}:{51+4*c}], v8, s[12:15], 0 offen")
        if c < 7:
            a("v_add_u32 v8, s23, v8")
    a("s_waitcnt vmcnt(0)")
    a.label(".k0_end")
    a("s_endpgm")
    KERNELS.append((label, 80, 0))
    LAUNCHES.append((label, nwg, 256, 0))


def gen_gemm(a, label, jobs, TM, TN):
    nwg = sum(j['MT'] * j['NT'] for j in jobs)
    L = label.replace("_kernel", "")
    kernel_begin(a, label)
    a(f"""
    s_cmp_ge_u32 s2, {nwg}
    s_cbranch_scc1 .{L}_end
    """)
    base = 0
    for i, j in enumerate(jobs):
        n = j['MT'] * j['NT']
        nxt = f".{L}_j{i+1}"
        a(f"s_cmp_ge_u32 s2, {base + n}")
        a(f"s_cbranch_scc1 {nxt}")
        a(f"s_sub_u32 s7, s2, {base}")
        a(f"s_load_dwordx2 s[8:9], s[0:1], {ARG[j['A'][0]]}")
        a(f"s_load_dwordx2 s[10:11], s[0:1], {ARG[j['B'][0]]}")
        a(f"s_load_dwordx2 s[12:13], s[0:1], {ARG[j['O'][0]]}")
        s_div(a, "s21", "s7", j['MT'], n)
        a(f"s_mul_i32 s20, s21, {j['MT']}")
        a("s_sub_u32 s20, s7, s20")
        a(f"s_mov_b32 s22, {j['lda']}")
        a(f"s_mov_b32 s23, {j['ldb']}")
        a(f"s_mov_b32 s24, {j['ldo']}")
        a(f"s_mov_b32 s25, {j['A'][1]}")
        a(f"s_mov_b32 s26, {j['B'][1]}")
        a(f"s_mov_b32 s27, {j['O'][1]}")
        a(f"s_mov_b32 s28, {j['K'] * 2}")
        a(f"s_mov_b32 s29, {ARG_BYTES[j['A'][0]]}")
        a(f"s_mov_b32 s30, {ARG_BYTES[j['B'][0]]}")
        a(f"s_mov_b32 s31, {ARG_BYTES[j['O'][0]]}")
        a(f"s_branch .{L}_go")
        a.label(nxt)
        base += n
    a("s_endpgm")
    a.label(f".{L}_go")
    a("""
    s_waitcnt lgkmcnt(0)
    s_mov_b32 s32, s8
    s_mov_b32 s33, s9
    s_mov_b32 s34, s29
    s_mov_b32 s35, 0x00020000
    s_mov_b32 s36, s10
    s_mov_b32 s37, s11
    s_mov_b32 s38, s30
    s_mov_b32 s39, 0x00020000
    s_mov_b32 s40, s12
    s_mov_b32 s41, s13
    s_mov_b32 s42, s31
    s_mov_b32 s43, 0x00020000
    """)
    a(f"""
    v_lshrrev_b32 v1, 6, v0
    s_nop 1
    v_readfirstlane_b32 s3, v1
    s_and_b32 s44, s3, 1
    s_lshr_b32 s45, s3, 1
    s_mul_i32 s46, s20, {64*TM}
    s_mul_i32 s44, s44, {32*TM}
    s_add_u32 s46, s46, s44
    s_mul_i32 s47, s21, {64*TN}
    s_mul_i32 s45, s45, {32*TN}
    s_add_u32 s47, s47, s45
    v_and_b32 v1, 31, v0
    v_bfe_u32 v2, v0, 5, 1
    v_lshlrev_b32 v3, 5, v2
    """)
    VA, VB = 4, 4 + TM
    for t in range(TM):
        a(f"v_add_u32 v{VA+t}, s46, v1")
        if t:
            a(f"v_add_u32 v{VA+t}, {32*t}, v{VA+t}")
        a(f"v_mul_lo_u32 v{VA+t}, v{VA+t}, s22")
        a(f"v_add_u32 v{VA+t}, v{VA+t}, v3")
        a(f"v_add_u32 v{VA+t}, s25, v{VA+t}")
    for t in range(TN):
        a(f"v_add_u32 v{VB+t}, s47, v1")
        if t:
            a(f"v_add_u32 v{VB+t}, {32*t}, v{VB+t}")
        a(f"v_mul_lo_u32 v{VB+t}, v{VB+t}, s23")
        a(f"v_add_u32 v{VB+t}, v{VB+t}, v3")
        a(f"v_add_u32 v{VB+t}, s26, v{VB+t}")
    ACC = 16
    NACC = TM * TN * 16
    FR = ACC + NACC
    FSZ = (TM + TN) * 8
    for r in range(NACC):
        a(f"v_mov_b32 v{ACC+r}, 0")

    def loads(buf):
        b = FR + buf * FSZ
        for t in range(TM):
            a(f"buffer_load_dwordx4 v[{b+8*t}:{b+8*t+3}], v{VA+t}, s[32:35], s48 offen")
            a(f"buffer_load_dwordx4 v[{b+8*t+4}:{b+8*t+7}], v{VA+t}, s[32:35], s48 offen offset:16")
        b += 8 * TM
        for t in range(TN):
            a(f"buffer_load_dwordx4 v[{b+8*t}:{b+8*t+3}], v{VB+t}, s[36:39], s48 offen")
            a(f"buffer_load_dwordx4 v[{b+8*t+4}:{b+8*t+7}], v{VB+t}, s[36:39], s48 offen offset:16")

    def mfmas(buf):
        b = FR + buf * FSZ
        for h in range(2):
            for tm in range(TM):
                for tn in range(TN):
                    c = ACC + (tm * TN + tn) * 16
                    ra = b + 8 * tm + 4 * h
                    rb = b + 8 * TM + 8 * tn + 4 * h
                    a(f"v_mfma_f32_32x32x16_bf16 v[{c}:{c+15}], v[{ra}:{ra+3}], v[{rb}:{rb+3}], v[{c}:{c+15}]")

    NL = 2 * (TM + TN)
    a("s_mov_b32 s48, 0")
    loads(0)
    a.label(f".{L}_loop")
    a("s_add_u32 s48, s48, 64")
    loads(1)
    a(f"s_waitcnt vmcnt({NL})")
    mfmas(0)
    a("s_add_u32 s48, s48, 64")
    a("s_cmp_ge_u32 s48, s28")
    a(f"s_cbranch_scc1 .{L}_last")
    loads(0)
    a(f"s_waitcnt vmcnt({NL})")
    mfmas(1)
    a(f"s_branch .{L}_loop")
    a.label(f".{L}_last")
    a("s_waitcnt vmcnt(0)")
    mfmas(1)
    a("s_nop 15")
    a("s_nop 15")
    a(f"""
    v_add_u32 v4, s47, v1
    v_mul_lo_u32 v4, v4, s24
    v_lshlrev_b32 v5, 4, v2
    v_add_u32 v4, v4, v5
    s_lshl_b32 s49, s46, 1
    s_add_u32 s49, s49, s27
    v_add_u32 v4, s49, v4
    s_lshl_b32 s50, s24, 5
    """)
    for tn in range(TN):
        for tm in range(TM):
            c = ACC + (tm * TN + tn) * 16
            p = FR
            for q in range(8):
                a(f"v_cvt_pk_bf16_f32 v{p+q}, v{c+2*q}, v{c+2*q+1}")
            a("s_nop 1")
            for pr in range(2):
                for w in range(2):
                    a(f"v_permlane32_swap_b32 v{p+4*pr+w}, v{p+4*pr+2+w}")
            a("s_nop 1")
            a(f"buffer_store_dwordx4 v[{p}:{p+3}], v4, s[40:43], 0 offen offset:{tm*64}")
            a(f"buffer_store_dwordx4 v[{p+4}:{p+7}], v4, s[40:43], 0 offen offset:{tm*64+32}")
            a("s_nop 1")
        if tn < TN - 1:
            a("v_add_u32 v4, s50, v4")
    a("s_waitcnt vmcnt(0)")
    a.label(f".{L}_end")
    a("s_endpgm")
    KERNELS.append((label, FR + 2 * FSZ, 0))
    LAUNCHES.append((label, nwg, 256, 0))


def emit(path):
    a = Asm()
    gen_k0(a)
    gen_gemm(a, "k1_gemm_kernel", [
        dict(A=('ws', WS_WT), lda=1280, B=('A_x', 0), ldb=1280, K=640, O=('ws', WS_QK), ldo=16384, MT=64, NT=16),
        dict(A=('A_x', 0), lda=1280, B=('ws', WS_WT + 8192 * 1280), ldb=1280, K=640, O=('ws', WS_VT), ldo=4096, MT=16, NT=32),
        dict(A=('ws', WS_BWT), lda=1280, B=('B_x', 0), ldb=1280, K=640, O=('ws', WS_BQ), ldo=3840, MT=15, NT=16),
    ], 2, 2)
    try:
        import gen_chain
        gen_chain.gen_all(a, sys.modules[__name__])
    except ImportError:
        pass
    gen_gemm(a, "k4_gemm_kernel", [
        dict(A=('ws', WS_WOT), lda=8192, B=('ws', WS_OA), ldb=8192, K=4096, O=('out', 0), ldo=2560, MT=10, NT=16),
        dict(A=('ws', WS_BWOT), lda=1280, B=('ws', WS_OB), ldb=1280, K=640, O=('out', 1280), ldo=2560, MT=10, NT=16),
    ], 1, 2)

    hdr = open(f"cdna_kernels/{NAME}.s.ref").read().split("; Override launch geometry")[0]
    out = [hdr.rstrip("\n")]
    for (lab, g, b, lds) in LAUNCHES:
        out.append(f"; @launch kernel={lab} grid=({g},1,1) block=({b},1,1) lds={lds}")
    out.append('.amdgcn_target "amdgcn-amd-amdhsa--gfx950"')
    out.append(".text")
    out += a.lines
    out.append('.section .rodata,"a"')
    for (lab, vg, ag) in KERNELS:
        acc_off = (vg + 3) // 4 * 4
        tot = acc_off + ag
        out.append(".p2align 6")
        out.append(f".amdhsa_kernel {lab}")
        out.append(f"  .amdhsa_next_free_vgpr {tot}")
        out.append("  .amdhsa_next_free_sgpr 102")
        out.append(f"  .amdhsa_accum_offset {acc_off}")
        out.append("  .amdhsa_group_segment_fixed_size 0")
        out.append("  .amdhsa_kernarg_size 104")
        out.append("  .amdhsa_user_sgpr_count 2")
        out.append("  .amdhsa_user_sgpr_kernarg_segment_ptr 1")
        out.append("  .amdhsa_system_sgpr_workgroup_id_x 1")
        out.append(".end_amdhsa_kernel")
    open(path, "w").write("\n".join(out) + "\n")


if __name__ == "__main__":
    emit(sys.argv[1] if len(sys.argv) > 1 else f"cdna_kernels/{NAME}.s")
```

```python
WOL, WOL_LD = 0, 144
MEML, MEML_LD = 92160, 1296
QL, QL_LD = 112896, 272
KL = 117248
VL, VL_LD = 130304, 80
OL, OL_LD = 135424, 144
RED = 137728
LDS_BYTES = 139776
NCH, NRED = 64, 80
SPIN_MAX = 1 << 21
import os
INSTR = int(os.environ.get('INSTR', '0'))
CP = int(os.environ.get('CP', '4'))
RP = int(os.environ.get('RP', '4'))
CS = int(os.environ.get('CS', '0'))
RS = int(os.environ.get('RS', '0'))


def stamp(a, i, stepreg="s19", step=20):
    if not INSTR:
        return
    lb = a.new_label("st")
    a(f"s_cmp_eq_u32 {stepreg}, {step}")
    a(f"s_cbranch_scc0 {lb}")
    a(f"s_memtime s[{60+2*i}:{61+2*i}]")
    a("s_waitcnt lgkmcnt(0)")
    a.label(lb)


def rstamp(a, i, stepreg="s19", step=20, wait=False):
    if INSTR < 2:
        return
    lb = a.new_label("rt")
    a(f"s_cmp_eq_u32 {stepreg}, {step}")
    a(f"s_cbranch_scc0 {lb}")
    if wait:
        a("s_waitcnt vmcnt(0)")
    a("s_memrealtime s[80:81]")
    a("s_waitcnt lgkmcnt(0)")
    a(f"s_mov_b32 s{84+i}, s80")
    a.label(lb)


def dump_rt(a, G):
    if INSTR < 2:
        return
    a("s_lshl_b32 s28, s2, 2")
    a("s_add_u32 s28, s28, s18")
    a("s_lshl_b32 s28, s28, 5")
    a("s_add_u32 s28, s28, 0x9000000")
    a("v_mov_b32 v1, s28")
    for i in range(4):
        a(f"v_mov_b32 v2, s{84+i}")
        a(f"buffer_store_dword v2, v1, s[8:11], 0 offen offset:{4*i}")
    a("s_waitcnt vmcnt(0)")


def dump_stamps(a, G, wg, base, n, extra):
    if not INSTR:
        return
    lb = a.new_label("ds")
    a(f"s_cmp_eq_u32 s2, {wg}")
    a(f"s_cbranch_scc0 {lb}")
    a("s_cmp_eq_u32 s18, 0")
    a(f"s_cbranch_scc0 {lb}")
    a(f"s_load_dwordx2 s[4:5], s[0:1], {G.ARG['dbg']}")
    a("s_waitcnt lgkmcnt(0)")
    G.srd(a, 12, 4, 256)
    a("v_mov_b32 v1, 0")
    for i in range(n):
        a(f"v_mov_b32 v2, s{60+2*i}")
        a(f"buffer_store_dword v2, v1, s[12:15], 0 offen offset:{base+4*i}")
    a(f"v_mov_b32 v2, {extra}")
    a(f"buffer_store_dword v2, v1, s[12:15], 0 offen offset:{base+4*n}")
    a("s_waitcnt vmcnt(0)")
    a.label(lb)


def wreg(tile, ks):
    if tile < 3:
        b = tile * 80 + ks * 4
        return f"a[{b}:{b+3}]"
    if tile == 3:
        if ks < 4:
            b = 240 + ks * 4
            return f"a[{b}:{b+3}]"
        b = 112 + (ks - 4) * 4
        return f"v[{b}:{b+3}]"
    b = 176 + ks * 4
    return f"v[{b}:{b+3}]"


def v_div(a, dst, src, d, maxv, G):
    m, sh = G.magic_div(d, maxv)
    a(f"s_mov_b32 s90, {m}")
    a(f"v_mul_lo_u32 {dst}, {src}, s90")
    a(f"v_lshrrev_b32 {dst}, {sh}, {dst}")


def xlane_reduce(a, op, x, t1, t2):
    a(f"v_mov_b32 {t1}, {x}")
    a(f"v_mov_b32 {t2}, {x}")
    a("s_nop 1")
    a(f"v_permlane16_swap_b32 {t1}, {t2}")
    a("s_nop 1")
    a(f"{op} {x}, {t1}, {t2}")
    a(f"v_mov_b32 {t1}, {x}")
    a(f"v_mov_b32 {t2}, {x}")
    a("s_nop 1")
    a(f"v_permlane32_swap_b32 {t1}, {t2}")
    a("s_nop 1")
    a(f"{op} {x}, {t1}, {t2}")


def round_bf16_pair(a, r0, r1, t):
    a(f"v_cvt_pk_bf16_f32 {t}, {r0}, {r1}")
    a(f"v_lshlrev_b32 {r0}, 16, {t}")
    a(f"v_and_b32 {r1}, 0xffff0000, {t}")


def gen_chain(a, G):
    label = "k2_chain_kernel"
    G.kernel_begin(a, label)
    a(f"""
    s_cmp_ge_u32 s2, {NCH + NRED}
    s_cbranch_scc1 .k2_end
    s_load_dwordx2 s[4:5], s[0:1], {G.ARG['ws']}
    s_load_dwordx2 s[6:7], s[0:1], {G.ARG['mem0']}
    v_lshrrev_b32 v1, 6, v0
    s_nop 1
    v_readfirstlane_b32 s18, v1
    v_and_b32 v1, 63, v0
    v_and_b32 v2, 15, v1
    v_lshrrev_b32 v3, 4, v1
    s_waitcnt lgkmcnt(0)
    """)
    G.srd(a, 8, 4, G.WS_BYTES)
    G.srd(a, 12, 6, G.ARG_BYTES['mem0'])
    a(f"""
    s_cmp_ge_u32 s2, {NCH}
    s_cbranch_scc1 .k2_reducer
    s_lshr_b32 s16, s2, 1
    s_and_b32 s17, s2, 1
    s_mov_b32 s22, 0x00ff00ff
    s_mov_b32 s23, 0x00ff00ff
    s_mov_b32 s24, 0xffffffff
    s_mov_b32 s25, 0
    s_mov_b32 s26, 0x07060302
    s_mov_b32 s51, 4096
    s_mov_b32 s52, 8192
    s_mov_b32 s53, 12288
    s_mov_b32 s54, 16384
    """)
    a("""
    s_lshl_b32 s28, s16, 7
    s_lshl_b32 s29, s18, 5
    s_add_u32 s28, s28, s29
    v_add_u32 v4, s28, v2
    v_mul_u32_u24 v4, 1280, v4
    v_lshlrev_b32 v5, 4, v3
    v_add_u32 v4, v4, v5
    """)
    a(f"v_add_u32 v4, {G.WS_WT}, v4")
    a(f"v_add_u32 v5, {16*1280}, v4")
    a(f"v_add_u32 v6, {4096*1280}, v4")
    a(f"v_add_u32 v7, {(4096+16)*1280}, v4")
    a("""
    s_lshl_b32 s28, s16, 7
    s_lshl_b32 s29, s17, 6
    s_add_u32 s28, s28, s29
    s_lshl_b32 s29, s18, 4
    s_add_u32 s28, s28, s29
    v_add_u32 v8, s28, v2
    v_mul_u32_u24 v8, 1280, v8
    v_lshlrev_b32 v9, 4, v3
    v_add_u32 v8, v8, v9
    """)
    a(f"v_add_u32 v8, {G.WS_WT + 8192*1280}, v8")
    for t in range(5):
        for ks in range(20):
            a(f"buffer_load_dwordx4 {wreg(t, ks)}, v{4+t}, s[8:11], 0 offen offset:{ks*64}")
        if t % 2 == 1:
            a("s_waitcnt vmcnt(0)")
    a(f"""
    v_lshrrev_b32 v4, 3, v0
    v_and_b32 v5, 7, v0
    v_lshlrev_b32 v6, 13, v4
    v_lshlrev_b32 v7, 4, v5
    v_add_u32 v6, v6, v7
    s_lshl_b32 s28, s16, 8
    s_lshl_b32 s29, s17, 7
    s_add_u32 s28, s28, s29
    s_add_u32 s28, s28, {G.WS_WOT}
    v_add_u32 v6, s28, v6
    v_mul_u32_u24 v8, {WOL_LD}, v4
    v_add_u32 v8, v8, v7
    s_mov_b32 s28, 0
    """)
    for n in range(20):
        a(f"buffer_load_dwordx4 v[{16+4*n}:{19+4*n}], v6, s[8:11], s28 offen")
        a("s_add_u32 s28, s28, 0x40000")
    a("s_waitcnt vmcnt(0)")
    for n in range(20):
        if n == 10:
            a(f"v_add_u32 v8, {10*32*WOL_LD}, v8")
        a(f"ds_write_b128 v8, v[{16+4*n}:{19+4*n}] offset:{WOL + (n%10)*32*WOL_LD}")
    a(f"""
    v_mov_b32 v16, 0
    v_mov_b32 v17, 0
    v_mov_b32 v18, 0
    v_mov_b32 v19, 0
    v_lshlrev_b32 v4, 4, v0
    v_add_u32 v4, {MEML + 8*MEML_LD}, v4
    ds_write_b128 v4, v[16:19]
    ds_write_b128 v4, v[16:19] offset:4096
    v_cmp_gt_u32 vcc, {648-512}, v0
    s_and_saveexec_b64 s[30:31], vcc
    ds_write_b128 v4, v[16:19] offset:8192
    s_mov_b64 exec, s[30:31]
    """)
    a(f"""
    v_mul_u32_u24 v4, {MEML_LD}, v2
    v_lshlrev_b32 v26, 4, v3
    v_add_u32 v4, v4, v26
    v_add_u32 v4, {MEML}, v4
    v_lshlrev_b32 v5, 4, v0
    v_add_u32 v5, {G.WS_EX3}, v5
    """)
    for n in range(5):
        a(f"v_add_u32 v27, {n*256}, v0")
        v_div(a, "v28", "v27", 160, 1280, G)
        a("v_mul_u32_u24 v29, 160, v28")
        a("v_sub_u32 v29, v27, v29")
        a(f"v_mul_u32_u24 v28, {MEML_LD}, v28")
        a("v_lshlrev_b32 v29, 3, v29")
        a(f"v_add_u32 v{6+n}, v28, v29")
        a(f"v_add_u32 v{6+n}, {MEML}, v{6+n}")
    a(f"""
    v_mul_u32_u24 v27, {QL_LD}, v2
    v_lshlrev_b32 v28, 3, v3
    s_lshl_b32 s28, s18, 6
    v_add_u32 v29, v27, v28
    v_add_u32 v29, s28, v29
    v_add_u32 v11, {QL}, v29
    v_add_u32 v12, {KL + 32*QL_LD}, v29
    v_add_u32 v13, v27, v26
    v_add_u32 v14, {KL}, v13
    v_add_u32 v13, {QL}, v13
    s_lshl_b32 s28, s18, 4
    v_add_u32 v15, s28, v2
    v_mul_u32_u24 v15, {VL_LD}, v15
    v_add_u32 v15, v15, v28
    v_add_u32 v15, {VL}, v15
    v_mul_u32_u24 v27, {OL_LD}, v2
    s_lshl_b32 s28, s18, 5
    v_add_u32 v16, v27, v28
    v_add_u32 v16, s28, v16
    v_add_u32 v16, {OL}, v16
    v_add_u32 v17, v27, v26
    v_add_u32 v17, {OL}, v17
    s_mul_i32 s28, s18, 160
    v_add_u32 v18, s28, v2
    v_mul_u32_u24 v18, {WOL_LD}, v18
    v_add_u32 v18, v18, v26
    """)
    a(f"""
    v_lshrrev_b32 v27, 1, v3
    v_lshrrev_b32 v28, 3, v2
    v_lshlrev_b32 v28, 1, v28
    v_add_u32 v27, v27, v28
    s_mul_i32 s28, s18, 20
    v_add_u32 v27, s28, v27
    v_lshlrev_b32 v27, 6, v27
    v_add_u32 v27, s2, v27
    v_lshlrev_b32 v27, 8, v27
    v_and_b32 v28, 7, v2
    v_lshlrev_b32 v28, 5, v28
    v_add_u32 v27, v27, v28
    v_and_b32 v28, 1, v3
    v_lshlrev_b32 v28, 4, v28
    v_add_u32 v27, v27, v28
    v_add_u32 v19, {G.WS_EX2}, v27
    s_mov_b32 s27, 0xffffffc0
    """)
    a(f"""
    v_lshrrev_b32 v27, 4, v0
    v_and_b32 v28, 15, v0
    v_lshlrev_b32 v28, 4, v28
    v_lshlrev_b32 v20, 14, v27
    v_add_u32 v20, v20, v28
    s_lshl_b32 s28, s16, 8
    s_add_u32 s28, s28, {G.WS_QK + 8192}
    v_add_u32 v20, s28, v20
    v_mul_u32_u24 v21, {QL_LD}, v27
    v_add_u32 v21, v21, v28
    v_add_u32 v21, {KL}, v21
    v_lshrrev_b32 v27, 2, v0
    v_and_b32 v28, 3, v0
    v_lshlrev_b32 v28, 4, v28
    s_lshl_b32 s28, s16, 7
    s_lshl_b32 s29, s17, 6
    s_add_u32 s28, s28, s29
    v_add_u32 v22, s28, v27
    v_lshlrev_b32 v22, 12, v22
    v_add_u32 v22, v22, v28
    v_add_u32 v22, {G.WS_VT}, v22
    v_mul_u32_u24 v23, {VL_LD}, v27
    v_add_u32 v23, v23, v28
    v_add_u32 v23, {VL}, v23
    """)
    a(f"""
    s_lshl_b32 s28, s16, 3
    v_add_u32 v24, s28, v2
    v_lshlrev_b32 v24, 8, v24
    v_lshlrev_b32 v27, 3, v3
    v_add_u32 v24, v24, v27
    s_lshl_b32 s28, s18, 6
    s_add_u32 s28, s28, {G.WS_KM}
    v_add_u32 v24, s28, v24
    s_lshl_b32 s28, s16, 7
    s_lshl_b32 s29, s17, 6
    s_add_u32 s28, s28, s29
    s_lshl_b32 s29, s18, 4
    s_add_u32 s28, s28, s29
    v_add_u32 v25, s28, v2
    v_lshlrev_b32 v25, 4, v25
    v_add_u32 v25, v25, v27
    v_add_u32 v25, {G.WS_VMT}, v25
    """)
    a("v_lshlrev_b32 v27, 3, v0")
    for n in range(5):
        a(f"buffer_load_dwordx2 v[{68+2*n}:{69+2*n}], v27, s[12:15], {'0' if n < 2 else 's%d' % (50 + (n >> 1))} offen offset:{(n&1)*2048}")
    a("""
    s_mov_b32 s28, 0x40000
    buffer_load_dwordx4 v[28:31], v20, s[8:11], 0 offen
    buffer_load_dwordx4 v[32:35], v20, s[8:11], s28 offen
    buffer_load_dwordx4 v[36:39], v22, s[8:11], 0 offen
    s_waitcnt vmcnt(0)
    """)
    for n in range(5):
        a(f"ds_write_b64 v{6+n}, v[{68+2*n}:{69+2*n}]")
    a(f"""
    ds_write_b128 v21, v[28:31]
    ds_write_b128 v21, v[32:35] offset:{16*QL_LD}
    ds_write_b128 v23, v[36:39]
    s_mov_b32 s19, 0
    s_mov_b32 s40, 0x3fb8aa3b
    s_mov_b32 s41, 0x3db504f3
    """)
    a.label(".k2_step")
    a("""
    s_waitcnt lgkmcnt(0)
    s_barrier
    """)
    stamp(a, 0)
    a("""
    s_add_u32 s28, s19, 1
    s_min_u32 s28, s28, 63
    s_lshl_b32 s29, s28, 19
    s_add_u32 s30, s29, 0x40000
    s_lshl_b32 s31, s28, 6
    buffer_load_dwordx4 v[28:31], v20, s[8:11], s29 offen
    buffer_load_dwordx4 v[32:35], v20, s[8:11], s30 offen
    buffer_load_dwordx4 v[36:39], v22, s[8:11], s31 offen
    """)
    for ks in range(4):
        a(f"ds_read_b128 v[{60+4*ks}:{63+4*ks}], v4 offset:{ks*64}")
    for ks in range(20):
        b = 60 + 4 * (ks % 4)
        rem = min(3, 19 - ks)
        a(f"s_waitcnt lgkmcnt({rem})")
        for t in range(5):
            c = 40 + 4 * t
            cin = "0" if ks == 0 else f"v[{c}:{c+3}]"
            if t < 4:
                a(f"v_mfma_f32_16x16x32_bf16 v[{c}:{c+3}], {wreg(t, ks)}, v[{b}:{b+3}], {cin}")
            else:
                a(f"v_mfma_f32_16x16x32_bf16 v[{c}:{c+3}], v[{b}:{b+3}], {wreg(t, ks)}, {cin}")
        if ks + 4 < 20:
            a(f"ds_read_b128 v[{b}:{b+3}], v4 offset:{(ks+4)*64}")
    a("s_nop 7")
    a("s_nop 7")
    stamp(a, 1)
    for t in range(4):
        c = 40 + 4 * t
        a(f"v_cvt_pk_bf16_f32 v{60+2*t}, v{c}, v{c+1}")
        a(f"v_cvt_pk_bf16_f32 v{61+2*t}, v{c+2}, v{c+3}")
    a("v_cvt_pk_bf16_f32 v26, v56, v57")
    a("v_cvt_pk_bf16_f32 v27, v58, v59")
    a("""
    ds_write_b64 v11, v[60:61]
    ds_write_b64 v11, v[62:63] offset:32
    ds_write_b64 v12, v[64:65]
    ds_write_b64 v12, v[66:67] offset:32
    s_lshl_b32 s29, s19, 16
    s_mov_b64 exec, s[24:25]
    buffer_store_dwordx2 v[26:27], v25, s[8:11], s29 offen
    s_mov_b64 exec, s[22:23]
    s_cmp_eq_u32 s17, 0
    s_cbranch_scc0 .k2_nokm
    buffer_store_dwordx2 v[64:65], v24, s[8:11], s29 offen
    buffer_store_dwordx2 v[66:67], v24, s[8:11], s29 offen offset:32
    """)
    a.label(".k2_nokm")
    a("""
    s_mov_b64 exec, -1
    s_cmp_eq_u32 s19, 63
    s_cbranch_scc1 .k2_fin
    s_waitcnt lgkmcnt(0)
    s_barrier
    """)
    stamp(a, 2)
    for ks in range(4):
        a(f"ds_read_b128 v[{60+4*ks}:{63+4*ks}], v13 offset:{ks*64}")
    for ks in range(4):
        a(f"ds_read_b128 v[{40+4*ks}:{43+4*ks}], v14 offset:{ks*64}")
    for ks in range(4):
        a(f"ds_read_b128 v[{76+4*ks}:{79+4*ks}], v14 offset:{16*QL_LD + ks*64}")
    a(f"ds_read_b64 v[92:93], v15")
    a(f"ds_read_b64 v[94:95], v15 offset:32")
    a("s_waitcnt lgkmcnt(6)")
    for ks in range(4):
        cin = "0" if ks == 0 else "v[100:103]"
        a(f"v_mfma_f32_16x16x32_bf16 v[100:103], v[{40+4*ks}:{43+4*ks}], v[{60+4*ks}:{63+4*ks}], {cin}")
    for ks in range(4):
        a(f"ds_read_b128 v[{40+4*ks}:{43+4*ks}], v14 offset:{32*QL_LD + ks*64}")
    a("s_waitcnt lgkmcnt(6)")
    for ks in range(4):
        cin = "0" if ks == 0 else "v[104:107]"
        a(f"v_mfma_f32_16x16x32_bf16 v[104:107], v[{76+4*ks}:{79+4*ks}], v[{60+4*ks}:{63+4*ks}], {cin}")
    a("s_waitcnt lgkmcnt(0)")
    for ks in range(4):
        cin = "0" if ks == 0 else "v[108:111]"
        a(f"v_mfma_f32_16x16x32_bf16 v[108:111], v[{40+4*ks}:{43+4*ks}], v[{60+4*ks}:{63+4*ks}], {cin}")
    a("s_nop 7")
    a("s_nop 7")
    for p in range(6):
        round_bf16_pair(a, f"v{100+2*p}", f"v{101+2*p}", "v40")
    for r in range(12):
        a(f"v_mul_f32 v{100+r}, s41, v{100+r}")
    for p in range(6):
        round_bf16_pair(a, f"v{100+2*p}", f"v{101+2*p}", "v40")
    a("v_mov_b32 v41, 0xf149f2ca")
    a("v_cmp_gt_u32 vcc, 2, v3")
    a("s_nop 1")
    for r in range(4):
        a(f"v_cndmask_b32 v{108+r}, v41, v{108+r}, vcc")
    a("v_max3_f32 v42, v100, v101, v102")
    for r in range(3, 11, 2):
        a(f"v_max3_f32 v42, v42, v{100+r}, v{101+r}")
    a("v_max_f32 v42, v42, v111")
    xlane_reduce(a, "v_max_f32", "v42", "v43", "v44")
    for r in range(12):
        a(f"v_sub_f32 v{100+r}, v{100+r}, v42")
    for r in range(12):
        a(f"v_mul_f32 v{100+r}, s40, v{100+r}")
    for r in range(12):
        a(f"v_exp_f32 v{100+r}, v{100+r}")
    a("s_nop 1")
    a("v_add_f32 v42, v100, v101")
    for r in range(2, 12):
        a(f"v_add_f32 v42, v42, v{100+r}")
    xlane_reduce(a, "v_add_f32", "v42", "v43", "v44")
    a("v_rcp_f32 v42, v42")
    a("s_nop 1")
    for r in range(12):
        a(f"v_mul_f32 v{100+r}, v{100+r}, v42")
    for p in range(6):
        a(f"v_cvt_pk_bf16_f32 v{44+p}, v{100+2*p}, v{101+2*p}")
    a("s_nop 1")
    a("v_mfma_f32_16x16x16_bf16 v[52:55], v[92:93], v[44:45], 0")
    a("v_mfma_f32_16x16x16_bf16 v[52:55], v[94:95], v[46:47], v[52:55]")
    a("v_mfma_f32_16x16x16_bf16 v[52:55], v[26:27], v[48:49], v[52:55]")
    for f in range(4):
        a(f"ds_read_b128 v[{76+4*f}:{79+4*f}], v18 offset:{(f>>1)*16*WOL_LD + (f&1)*64}")
    a("s_nop 7")
    a("s_nop 3")
    a("v_cvt_pk_bf16_f32 v56, v52, v53")
    a("v_cvt_pk_bf16_f32 v57, v54, v55")
    a("ds_write_b64 v16, v[56:57]")
    stamp(a, 3)
    a("s_waitcnt lgkmcnt(0)")
    a("s_barrier")
    stamp(a, 4)
    a(f"""
    s_waitcnt vmcnt(0)
    ds_write_b128 v21, v[28:31]
    ds_write_b128 v21, v[32:35] offset:{16*QL_LD}
    ds_write_b128 v23, v[36:39]
    ds_read_b128 v[68:71], v17
    ds_read_b128 v[72:75], v17 offset:64
    """)
    a("s_add_u32 s20, s19, 1")
    a("v_mov_b32 v108, s20")
    a("s_mov_b32 s28, 0")

    def e2_store(p):
        c = 28 + 8 * p
        for r in range(4):
            a(f"v_mov_b32_dpp v{c+r}, v{c+4+r} row_ror:8 row_mask:0xf bank_mask:0xc")
        for r in range(4):
            a(f"v_bfi_b32 v{c+r}, s27, v{c+r}, v108")
        a(f"buffer_store_dwordx4 v[{c}:{c+3}], v19, s[8:11], s28 offen sc1")
        a("s_add_u32 s28, s28, 0x10000")

    for bt in range(5):
        cur = 76 + 16 * (bt & 1)
        nxt = 76 + 16 * ((bt + 1) & 1)
        if bt < 4:
            for f in range(4):
                a(f"ds_read_b128 v[{nxt+4*f}:{nxt+3+4*f}], v18 offset:{((bt+1)*2+(f>>1))*16*WOL_LD + (f&1)*64}")
            a("s_waitcnt lgkmcnt(4)")
        else:
            a("s_waitcnt lgkmcnt(0)")
        for tl in range(2):
            c = 28 + 4 * (bt * 2 + tl)
            a(f"v_mfma_f32_16x16x32_bf16 v[{c}:{c+3}], v[{cur+8*tl}:{cur+8*tl+3}], v[68:71], 0")
            a(f"v_mfma_f32_16x16x32_bf16 v[{c}:{c+3}], v[{cur+8*tl+4}:{cur+8*tl+7}], v[72:75], v[{c}:{c+3}]")
        if bt:
            e2_store(bt - 1)
    a("s_nop 7")
    a("s_nop 3")
    stamp(a, 5)
    rstamp(a, 0)
    e2_store(4)
    stamp(a, 6)
    rstamp(a, 1, wait=True)
    a("s_mov_b32 s21, 0")
    if CP < 64:
        a(f"s_mov_b64 exec, {(1 << CP) - 1}")
    a.label(".k2_poll")
    if CS:
        a(f"s_sleep {CS}")
    a("buffer_load_dwordx4 v[68:71], v5, s[8:11], 0 offen sc1")
    a("s_waitcnt vmcnt(0)")
    for r in range(4):
        a(f"v_xor_b32 v{40+r}, s20, v{68+r}")
    a("v_or3_b32 v40, v40, v41, v42")
    a("v_or_b32 v40, v40, v43")
    a("v_and_b32 v40, 0xffff, v40")
    a("v_cmp_ne_u32 vcc, 0, v40")
    a("s_cbranch_vccz .k2_poll2")
    a("s_add_u32 s21, s21, 1")
    a(f"s_cmp_lt_u32 s21, {SPIN_MAX}")
    a("s_cbranch_scc1 .k2_poll")
    a("s_endpgm")
    a.label(".k2_poll2")
    a("s_mov_b64 exec, -1")
    n0 = 1 if CP == 64 else 0
    for n in range(n0, 5):
        a(f"buffer_load_dwordx4 v[{68+4*n}:{71+4*n}], v5, s[8:11], {'0' if n == 0 else 's%d' % (50+n)} offen sc1")
    a("s_waitcnt vmcnt(0)")
    for r in range(20):
        a(f"v_xor_b32 v{40+r}, s20, v{68+r}")
    for r in range(1, 19, 2):
        a(f"v_or3_b32 v40, v40, v{40+r}, v{41+r}")
    a("v_or_b32 v40, v40, v59")
    a("v_and_b32 v40, 0xffff, v40")
    a("v_cmp_ne_u32 vcc, 0, v40")
    a("s_cbranch_vccz .k2_got")
    a("s_add_u32 s21, s21, 1")
    a(f"s_cmp_lt_u32 s21, {SPIN_MAX}")
    a("s_cbranch_scc1 .k2_poll2")
    a("s_endpgm")
    a.label(".k2_got")
    stamp(a, 7)
    rstamp(a, 2)
    if INSTR:
        a("s_cmp_eq_u32 s19, 20")
        a("s_cselect_b32 s59, s21, s59")
    for n in range(5):
        b = 68 + 4 * n
        a(f"v_perm_b32 v{40+2*n}, v{b+1}, v{b}, s26")
        a(f"v_perm_b32 v{41+2*n}, v{b+3}, v{b+2}, s26")
        a(f"ds_write_b64 v{6+n}, v[{40+2*n}:{41+2*n}]")
    a("s_add_u32 s19, s19, 1")
    a("s_branch .k2_step")
    a.label(".k2_fin")
    a("s_waitcnt vmcnt(0)")
    dump_rt(a, G)
    dump_stamps(a, G, 0, 0, 8, "s59")
    a("s_endpgm")

    a.label(".k2_reducer")
    a(f"""
    s_sub_u32 s16, s2, {NCH}
    s_lshl_b32 s28, s16, 14
    s_add_u32 s28, s28, {G.WS_EX2}
    s_lshl_b32 s29, s18, 6
    s_add_u32 s28, s28, s29
    v_lshrrev_b32 v4, 2, v1
    v_lshlrev_b32 v4, 8, v4
    v_and_b32 v8, 3, v1
    v_lshlrev_b32 v5, 4, v8
    v_add_u32 v4, v4, v5
    v_add_u32 v4, s28, v4
    v_lshrrev_b32 v7, 1, v8
    v_mul_u32_u24 v7, 2560, v7
    v_and_b32 v8, 1, v1
    v_lshlrev_b32 v8, 4, v8
    v_add_u32 v7, v7, v8
    s_lshl_b32 s29, s16, 5
    s_mul_i32 s28, s18, 5120
    s_add_u32 s29, s29, s28
    s_add_u32 s29, s29, {G.WS_EX3}
    v_add_u32 v7, s29, v7
    s_mov_b32 s24, 15
    s_mov_b32 s25, 0
    s_mov_b32 s20, 1
    s_mov_b32 s51, 4096
    s_mov_b32 s52, 8192
    s_mov_b32 s53, 12288
    """)
    a.label(".k2_rstep")
    stamp(a, 0, "s20", 21)
    a("s_mov_b32 s21, 0")
    if RP < 64:
        a(f"s_mov_b64 exec, {(1 << RP) - 1}")
    a.label(".k2_rpoll")
    if RS:
        a(f"s_sleep {RS}")
    a("buffer_load_dwordx4 v[16:19], v4, s[8:11], 0 offen sc1")
    a("s_waitcnt vmcnt(0)")
    for r in range(4):
        a(f"v_xor_b32 v{40+r}, s20, v{16+r}")
    a("v_or3_b32 v40, v40, v41, v42")
    a("v_or_b32 v40, v40, v43")
    a("v_and_b32 v40, 63, v40")
    a("v_cmp_ne_u32 vcc, 0, v40")
    a("s_cbranch_vccz .k2_rpoll2")
    a("s_add_u32 s21, s21, 1")
    a(f"s_cmp_lt_u32 s21, {SPIN_MAX}")
    a("s_cbranch_scc1 .k2_rpoll")
    a("s_endpgm")
    a.label(".k2_rpoll2")
    rstamp(a, 3, "s20", 21)
    a("s_mov_b64 exec, -1")
    n0 = 1 if RP == 64 else 0
    for n in range(n0, 4):
        a(f"buffer_load_dwordx4 v[{16+4*n}:{19+4*n}], v4, s[8:11], {'0' if n == 0 else 's%d' % (50+n)} offen sc1")
    a("s_waitcnt vmcnt(0)")
    for r in range(16):
        a(f"v_xor_b32 v{40+r}, s20, v{16+r}")
    for r in range(1, 15, 2):
        a(f"v_or3_b32 v40, v40, v{40+r}, v{41+r}")
    a("v_or_b32 v40, v40, v55")
    a("v_and_b32 v40, 63, v40")
    a("v_cmp_ne_u32 vcc, 0, v40")
    a("s_cbranch_vccz .k2_rgot")
    a("s_add_u32 s21, s21, 1")
    a(f"s_cmp_lt_u32 s21, {SPIN_MAX}")
    a("s_cbranch_scc1 .k2_rpoll2")
    a("s_endpgm")
    a.label(".k2_rgot")
    stamp(a, 1, "s20", 21)
    rstamp(a, 0, "s20", 21)
    if INSTR:
        a("s_cmp_eq_u32 s20, 21")
        a("s_cselect_b32 s59, s21, s59")
    for r in range(4):
        a(f"v_add_f32 v{16+r}, v{16+r}, v{20+r}")
        a(f"v_add_f32 v{24+r}, v{24+r}, v{28+r}")
    for r in range(4):
        a(f"v_add_f32 v{16+r}, v{16+r}, v{24+r}")
    a("s_nop 1")
    for ror in (4, 8):
        for r in range(4):
            a(f"v_add_f32_dpp v{16+r}, v{16+r}, v{16+r} row_ror:{ror} row_mask:0xf bank_mask:0xf")
        a("s_nop 1")
    for sw in ("v_permlane16_swap_b32", "v_permlane32_swap_b32"):
        for r in range(4):
            a(f"v_mov_b32 v{20+r}, v{16+r}")
        a("s_nop 1")
        for r in range(4):
            a(f"{sw} v{16+r}, v{20+r}")
        a("s_nop 1")
        for r in range(4):
            a(f"v_add_f32 v{16+r}, v{16+r}, v{20+r}")
        a("s_nop 1")
    a("""
    v_cvt_pk_bf16_f32 v20, v16, v17
    v_cvt_pk_bf16_f32 v21, v18, v19
    v_lshlrev_b32 v16, 16, v20
    v_and_b32 v17, 0xffff0000, v20
    v_lshlrev_b32 v18, 16, v21
    v_and_b32 v19, 0xffff0000, v21
    v_or_b32 v16, s20, v16
    v_or_b32 v17, s20, v17
    v_or_b32 v18, s20, v18
    v_or_b32 v19, s20, v19
    s_mov_b64 exec, s[24:25]
    buffer_store_dwordx4 v[16:19], v7, s[8:11], 0 offen sc1
    s_mov_b64 exec, -1
    """)
    a.label(".k2_rnext")
    stamp(a, 2, "s20", 21)
    rstamp(a, 1, "s20", 21)
    rstamp(a, 2, "s20", 21, wait=True)
    a("""
    s_add_u32 s20, s20, 1
    s_cmp_le_u32 s20, 63
    s_cbranch_scc1 .k2_rstep
    s_waitcnt vmcnt(0)
    """)
    dump_rt(a, G)
    dump_stamps(a, G, NCH, 64, 3, "s59")
    a.label(".k2_end")
    a("s_endpgm")
    G.KERNELS.append((label, 256, 256))
    G.LAUNCHES.append((label, NCH + NRED, 256, LDS_BYTES))


def gen_all(a, G):
    gen_chain(a, G)


def gen_k3(a, G):
    label = "k3_attn_kernel"
    NA, NB = 512, 256
    G.kernel_begin(a, label)
    a(f"""
    s_cmp_ge_u32 s2, {NA + NB}
    s_cbranch_scc1 .k3_end
    s_load_dwordx2 s[4:5], s[0:1], {G.ARG['ws']}
    v_lshrrev_b32 v1, 6, v0
    s_nop 1
    v_readfirstlane_b32 s18, v1
    v_and_b32 v1, 63, v0
    s_waitcnt lgkmcnt(0)
    """)
    G.srd(a, 8, 4, G.WS_BYTES)
    a(f"""
    s_mov_b32 s40, 0x3fb8aa3b
    s_cmp_ge_u32 s2, {NA}
    s_cbranch_scc1 .k3_b
    s_lshl_b32 s16, s2, 2
    s_add_u32 s16, s16, s18
    s_and_b32 s17, s16, 31
    s_lshr_b32 s16, s16, 5
    s_mov_b32 s41, 0x3db504f3
    v_and_b32 v2, 31, v1
    v_lshrrev_b32 v3, 5, v1
    """)
    a(f"""
    s_lshl_b32 s28, s16, 19
    s_lshl_b32 s29, s17, 8
    s_add_u32 s28, s28, s29
    s_add_u32 s28, s28, {G.WS_QK}
    v_lshlrev_b32 v4, 14, v2
    v_lshlrev_b32 v5, 5, v3
    v_add_u32 v4, v4, v5
    v_add_u32 v4, s28, v4
    v_add_u32 v6, 0x2000, v4
    s_lshl_b32 s28, s16, 16
    s_lshl_b32 s29, s17, 11
    s_add_u32 s28, s28, s29
    s_add_u32 s28, s28, {G.WS_KM}
    v_and_b32 v7, 7, v2
    v_lshlrev_b32 v7, 8, v7
    v_add_u32 v7, v7, v5
    v_add_u32 v7, s28, v7
    """)
    for kb in range(4):
        for hf in range(2):
            o = kb * 64 + hf * 16
            i = kb * 2 + hf
            a(f"buffer_load_dwordx4 v[{16+4*i}:{19+4*i}], v4, s[8:11], 0 offen offset:{o}")
            a(f"buffer_load_dwordx4 v[{48+4*i}:{51+4*i}], v6, s[8:11], 0 offen offset:{o}")
            a(f"buffer_load_dwordx4 v[{80+4*i}:{83+4*i}], v7, s[8:11], 0 offen offset:{o}")
    a(f"""
    s_lshl_b32 s28, s17, 19
    s_lshl_b32 s29, s16, 6
    s_add_u32 s28, s28, s29
    s_add_u32 s28, s28, {G.WS_VT}
    v_lshlrev_b32 v8, 12, v2
    v_lshlrev_b32 v5, 3, v3
    v_add_u32 v8, v8, v5
    v_add_u32 v8, s28, v8
    s_lshl_b32 s28, s16, 16
    s_lshl_b32 s29, s17, 11
    s_add_u32 s28, s28, s29
    s_add_u32 s28, s28, {G.WS_VMT}
    v_lshlrev_b32 v9, 4, v2
    v_add_u32 v9, v9, v5
    v_add_u32 v9, s28, v9
    s_mov_b32 s28, 0
    """)
    for et in range(4):
        b = 144 + 12 * et
        a(f"buffer_load_dwordx2 v[{b}:{b+1}], v8, s[8:11], s28 offen")
        a(f"buffer_load_dwordx2 v[{b+2}:{b+3}], v8, s[8:11], s28 offen offset:16")
        a(f"buffer_load_dwordx2 v[{b+4}:{b+5}], v8, s[8:11], s28 offen offset:32")
        a(f"buffer_load_dwordx2 v[{b+6}:{b+7}], v8, s[8:11], s28 offen offset:48")
        a(f"buffer_load_dwordx2 v[{b+8}:{b+9}], v9, s[8:11], 0 offen offset:{et*512}")
        a(f"v_mov_b32 v{b+10}, 0")
        a(f"v_mov_b32 v{b+11}, 0")
        a("s_add_u32 s28, s28, 0x20000")
    a("s_waitcnt vmcnt(20)")
    for i in range(8):
        cin = "0" if i == 0 else "v[112:127]"
        a(f"v_mfma_f32_32x32x16_bf16 v[112:127], v[{48+4*i}:{51+4*i}], v[{16+4*i}:{19+4*i}], {cin}")
    for i in range(8):
        cin = "0" if i == 0 else "v[128:143]"
        a(f"v_mfma_f32_32x32x16_bf16 v[128:143], v[{80+4*i}:{83+4*i}], v[{16+4*i}:{19+4*i}], {cin}")
    a("s_nop 15")
    a("s_nop 7")
    S = list(range(112, 132))
    for p in range(10):
        round_bf16_pair(a, f"v{S[2*p]}", f"v{S[2*p+1]}", "v16")
    for r in S:
        a(f"v_mul_f32 v{r}, s41, v{r}")
    for p in range(10):
        round_bf16_pair(a, f"v{S[2*p]}", f"v{S[2*p+1]}", "v16")
    a("v_mov_b32 v17, 0xf149f2ca")
    a("v_lshlrev_b32 v18, 2, v3")
    a("v_sub_u32 v18, v2, v18")
    for r in range(16):
        k0 = (r & 3) + 8 * (r >> 2)
        a(f"v_cmp_le_i32 vcc, {k0}, v18")
        a("s_nop 1")
        a(f"v_cndmask_b32 v{112+r}, v17, v{112+r}, vcc")
    a("v_max3_f32 v19, v112, v113, v114")
    for r in range(115, 131, 2):
        a(f"v_max3_f32 v19, v19, v{r}, v{r+1}")
    a("v_max_f32 v19, v19, v131")

    def x32(op, x):
        a(f"v_mov_b32 v20, {x}")
        a(f"v_mov_b32 v21, {x}")
        a("s_nop 1")
        a("v_permlane32_swap_b32 v20, v21")
        a("s_nop 1")
        a(f"{op} {x}, v20, v21")
    x32("v_max_f32", "v19")
    for r in S:
        a(f"v_sub_f32 v{r}, v{r}, v19")
    for r in S:
        a(f"v_mul_f32 v{r}, s40, v{r}")
    for r in S:
        a(f"v_exp_f32 v{r}, v{r}")
    a("s_nop 1")
    a("v_add_f32 v19, v112, v113")
    for r in S[2:]:
        a(f"v_add_f32 v19, v19, v{r}")
    x32("v_add_f32", "v19")
    a("v_rcp_f32 v19, v19")
    a("s_nop 1")
    for r in S:
        a(f"v_mul_f32 v{r}, v{r}, v19")
    for p in range(10):
        a(f"v_cvt_pk_bf16_f32 v{24+p}, v{S[2*p]}, v{S[2*p+1]}")
    a("v_mov_b32 v34, 0")
    a("v_mov_b32 v35, 0")
    a("s_waitcnt vmcnt(0)")
    a("s_nop 1")
    for et in range(4):
        b = 144 + 12 * et
        c = 48 + 16 * et
        a(f"v_mfma_f32_32x32x16_bf16 v[{c}:{c+15}], v[{b}:{b+3}], v[24:27], 0")
        a(f"v_mfma_f32_32x32x16_bf16 v[{c}:{c+15}], v[{b+4}:{b+7}], v[28:31], v[{c}:{c+15}]")
        a(f"v_mfma_f32_32x32x16_bf16 v[{c}:{c+15}], v[{b+8}:{b+11}], v[32:35], v[{c}:{c+15}]")
    a(f"""
    s_lshl_b32 s28, s16, 18
    s_lshl_b32 s29, s17, 8
    s_add_u32 s28, s28, s29
    s_add_u32 s28, s28, {G.WS_OA}
    v_lshlrev_b32 v4, 13, v2
    v_lshlrev_b32 v5, 4, v3
    v_add_u32 v4, v4, v5
    v_add_u32 v4, s28, v4
    s_nop 15
    s_nop 7
    """)
    for et in range(4):
        c = 48 + 16 * et
        p = 16 + 8 * (et & 1)
        for q in range(8):
            a(f"v_cvt_pk_bf16_f32 v{p+q}, v{c+2*q}, v{c+2*q+1}")
        a("s_nop 1")
        for pr in range(2):
            for w in range(2):
                a(f"v_permlane32_swap_b32 v{p+4*pr+w}, v{p+4*pr+2+w}")
        a("s_nop 1")
        a(f"buffer_store_dwordx4 v[{p}:{p+3}], v4, s[8:11], 0 offen offset:{et*64}")
        a(f"buffer_store_dwordx4 v[{p+4}:{p+7}], v4, s[8:11], 0 offen offset:{et*64+32}")
    a("s_waitcnt vmcnt(0)")
    a("s_endpgm")

    a.label(".k3_b")
    a(f"""
    s_sub_u32 s16, s2, {NA}
    s_lshl_b32 s16, s16, 3
    v_lshrrev_b32 v2, 5, v0
    v_add_u32 v2, s16, v2
    v_and_b32 v3, 31, v0
    v_mul_u32_u24 v3, 40, v3
    s_mov_b32 s41, 0x3e64f92e
    s_movk_i32 s28, 3840
    """)
    a("v_mul_lo_u32 v4, v2, s28")
    a("v_add_u32 v4, v4, v3")
    a(f"v_add_u32 v4, {G.WS_BQ}, v4")
    a("buffer_load_dwordx4 v[16:19], v4, s[8:11], 0 offen")
    a("buffer_load_dwordx4 v[20:23], v4, s[8:11], 0 offen offset:16")
    a("buffer_load_dwordx2 v[24:25], v4, s[8:11], 0 offen offset:32")
    for w in range(8):
        a(f"v_subrev_u32 v5, {2*w}, v2")
        a("v_max_i32 v5, 0, v5")
        a("v_mul_lo_u32 v5, v5, s28")
        a("v_add_u32 v5, v5, v3")
        a(f"v_add_u32 v5, {G.WS_BQ}, v5")
        kb, vb = 28 + 12 * w, 128 + 12 * w
        a(f"buffer_load_dwordx4 v[{kb}:{kb+3}], v5, s[8:11], 0 offen offset:1280")
        a(f"buffer_load_dwordx4 v[{kb+4}:{kb+7}], v5, s[8:11], 0 offen offset:1296")
        a(f"buffer_load_dwordx2 v[{kb+8}:{kb+9}], v5, s[8:11], 0 offen offset:1312")
        a(f"buffer_load_dwordx4 v[{vb}:{vb+3}], v5, s[8:11], 0 offen offset:2560")
        a(f"buffer_load_dwordx4 v[{vb+4}:{vb+7}], v5, s[8:11], 0 offen offset:2576")
        a(f"buffer_load_dwordx2 v[{vb+8}:{vb+9}], v5, s[8:11], 0 offen offset:2592")
    a("s_waitcnt vmcnt(0)")
    for w in range(8):
        kb = 28 + 12 * w
        a(f"v_mov_b32 v{224+w}, 0")
        for d in range(10):
            a(f"v_dot2_f32_bf16 v{224+w}, v{16+d}, v{kb+d}, v{224+w}")
    for p in range(4):
        round_bf16_pair(a, f"v{224+2*p}", f"v{225+2*p}", "v6")
    for w in range(8):
        a(f"v_mul_f32 v{224+w}, s41, v{224+w}")
    for p in range(4):
        round_bf16_pair(a, f"v{224+2*p}", f"v{225+2*p}", "v6")
    a("v_mov_b32 v7, 0xf149f2ca")
    for w in range(1, 8):
        a(f"v_cmp_le_u32 vcc, {2*w}, v2")
        a("s_nop 1")
        a(f"v_cndmask_b32 v{224+w}, v7, v{224+w}, vcc")
    a("v_max3_f32 v8, v224, v225, v226")
    a("v_max3_f32 v8, v8, v227, v228")
    a("v_max3_f32 v8, v8, v229, v230")
    a("v_max_f32 v8, v8, v231")
    for w in range(8):
        a(f"v_sub_f32 v{224+w}, v{224+w}, v8")
    for w in range(8):
        a(f"v_mul_f32 v{224+w}, s40, v{224+w}")
    for w in range(8):
        a(f"v_exp_f32 v{224+w}, v{224+w}")
    a("s_nop 1")
    a("v_add_f32 v8, v224, v225")
    for w in range(2, 8):
        a(f"v_add_f32 v8, v8, v{224+w}")
    a("v_rcp_f32 v8, v8")
    a("s_nop 1")
    for w in range(8):
        a(f"v_mul_f32 v{224+w}, v{224+w}, v8")
    for p in range(4):
        round_bf16_pair(a, f"v{224+2*p}", f"v{225+2*p}", "v6")
    for w in range(8):
        vb = 128 + 12 * w
        for d in range(10):
            a(f"v_lshlrev_b32 v6, 16, v{vb+d}")
            a(f"v_and_b32 v7, 0xffff0000, v{vb+d}")
            if w == 0:
                a(f"v_mul_f32 v{232+2*d}, v224, v6")
                a(f"v_mul_f32 v{233+2*d}, v224, v7")
            else:
                a(f"v_fma_f32 v{232+2*d}, v{224+w}, v6, v{232+2*d}")
                a(f"v_fma_f32 v{233+2*d}, v{224+w}, v7, v{233+2*d}")
    for d in range(10):
        a(f"v_cvt_pk_bf16_f32 v{16+d}, v{232+2*d}, v{233+2*d}")
    a(f"""
    v_mul_u32_u24 v4, 1280, v2
    v_add_u32 v4, v4, v3
    v_add_u32 v4, {G.WS_OB}, v4
    buffer_store_dwordx4 v[16:19], v4, s[8:11], 0 offen
    buffer_store_dwordx4 v[20:23], v4, s[8:11], 0 offen offset:16
    buffer_store_dwordx2 v[24:25], v4, s[8:11], 0 offen offset:32
    s_waitcnt vmcnt(0)
    """)
    a.label(".k3_end")
    a("s_endpgm")
    G.KERNELS.append((label, 256, 0))
    G.LAUNCHES.append((label, NA + NB, 256, 0))


def gen_all(a, G):
    gen_chain(a, G)
    gen_k3(a, G)
```

```python
def gen_gemm2(a, G, label, jobs, BM, BN, WM, WN):
    NW = WM * WN
    TM, TN = BM // WM // 32, BN // WN // 32
    PA, PB = BM // 16 // NW, BN // 16 // NW
    P = PA + PB
    SS = (BM + BN) * 64
    GS = 65536 // SS
    L = label.replace("_kernel", "")
    nj = sum(j['xm'] * j['xn'] for j in jobs)
    nwg = 8 * nj
    lds = max(j['NB'] for j in jobs) * SS
    maxgrp = max((j['NB'] + GS - 1) // GS for j in jobs)

    VDA = 4
    VDB = VDA + PA
    VR = VDB + PB
    F0 = (VR + 4 * maxgrp + 3) // 4 * 4
    FSZ = (TM + TN) * 4
    F1 = F0 + FSZ
    ACC = F1 + FSZ
    NV = ACC + TM * TN * 16

    G.kernel_begin(a, label)
    a(f"""
    s_cmp_ge_u32 s2, {nwg}
    s_cbranch_scc1 .{L}_end
    v_lshrrev_b32 v1, 6, v0
    s_and_b32 s4, s2, 7
    v_readfirstlane_b32 s3, v1
    s_lshr_b32 s5, s2, 3
    v_and_b32 v1, 63, v0
    s_lshl_b32 s50, s3, 10
    """)
    base = 0
    for ji, j in enumerate(jobs):
        n = j['xm'] * j['xn']
        if ji < len(jobs) - 1:
            a(f"s_cmp_ge_u32 s5, {base + n}")
            a(f"s_cbranch_scc1 .{L}_j{ji+1}")
        body(a, G, L, ji, j, base, dict(BM=BM, BN=BN, WM=WM, WN=WN, NW=NW, TM=TM, TN=TN, PA=PA, PB=PB, P=P,
                                        SS=SS, GS=GS, VDA=VDA, VDB=VDB, VR=VR, F0=F0, F1=F1, ACC=ACC))
        if ji < len(jobs) - 1:
            a.label(f".{L}_j{ji+1}")
        base += n
    a.label(f".{L}_end")
    a("s_endpgm")
    G.KERNELS.append((label, NV, 0))
    G.LAUNCHES.append((label, nwg, NW * 64, lds))


def body(a, G, L, ji, j, base, c):
    BM, BN, WM, WN, NW, TM, TN = c['BM'], c['BN'], c['WM'], c['WN'], c['NW'], c['TM'], c['TN']
    PA, PB, P, SS, GS = c['PA'], c['PB'], c['P'], c['SS'], c['GS']
    VDA, VDB, VR, F0, F1, ACC = c['VDA'], c['VDB'], c['VR'], c['F0'], c['F1'], c['ACC']
    NB = j['NB']
    NS = j['K'] // 32
    assert NS % NB == 0 and NS >= NB
    ngrp = (NB + GS - 1) // GS
    lda, ldb, ldo = j['lda'], j['ldb'], j['ldo']
    J = f"{L}_b{ji}"
    a(f"s_sub_u32 s7, s5, {base}")
    a(f"s_load_dwordx2 s[8:9], s[0:1], {G.ARG[j['A'][0]]}")
    a(f"s_load_dwordx2 s[10:11], s[0:1], {G.ARG[j['B'][0]]}")
    a(f"s_load_dwordx2 s[12:13], s[0:1], {G.ARG[j['O'][0]]}")
    n = j['xm'] * j['xn']
    if j['split'] == 'm':
        G.s_div(a, "s21", "s7", j['xm'], n)
        a(f"s_mul_i32 s20, s21, {j['xm']}")
        a("s_sub_u32 s20, s7, s20")
        a(f"s_mul_i32 s6, s4, {j['xm']}")
        a("s_add_u32 s20, s20, s6")
    else:
        G.s_div(a, "s20", "s7", j['xn'], n)
        a(f"s_mul_i32 s21, s20, {j['xn']}")
        a("s_sub_u32 s21, s7, s21")
        a(f"s_mul_i32 s6, s4, {j['xn']}")
        a("s_add_u32 s21, s21, s6")
    a(f"""
    v_lshrrev_b32 v2, 2, v1
    v_lshrrev_b32 v3, 4, v1
    v_xor_b32 v3, v3, v1
    v_and_b32 v3, 3, v3
    v_lshlrev_b32 v3, 4, v3
    s_lshl_b32 s6, s3, 4
    s_mul_i32 s22, s20, {BM}
    s_add_u32 s22, s22, s6
    s_mul_i32 s23, s21, {BN}
    s_add_u32 s23, s23, s6
    s_mov_b32 s24, {lda}
    s_mov_b32 s25, {ldb}
    """)
    for i in range(PA):
        a(f"v_add_u32 v{VDA+i}, s22, v2")
        if i:
            a(f"v_add_u32 v{VDA+i}, {16*NW*i}, v{VDA+i}")
        a(f"v_mul_lo_u32 v{VDA+i}, v{VDA+i}, s24")
        a(f"v_add_u32 v{VDA+i}, v{VDA+i}, v3")
        if j['A'][1]:
            a(f"v_add_u32 v{VDA+i}, {j['A'][1]}, v{VDA+i}")
    for i in range(PB):
        a(f"v_add_u32 v{VDB+i}, s23, v2")
        if i:
            a(f"v_add_u32 v{VDB+i}, {16*NW*i}, v{VDB+i}")
        a(f"v_mul_lo_u32 v{VDB+i}, v{VDB+i}, s25")
        a(f"v_add_u32 v{VDB+i}, v{VDB+i}, v3")
        if j['B'][1]:
            a(f"v_add_u32 v{VDB+i}, {j['B'][1]}, v{VDB+i}")
    a("s_waitcnt lgkmcnt(0)")
    G.srd(a, 32, 8, G.ARG_BYTES[j['A'][0]])
    G.srd(a, 36, 10, G.ARG_BYTES[j['B'][0]])
    G.srd(a, 40, 12, G.ARG_BYTES[j['O'][0]])

    def dma_ops(slot):
        ops = []
        for i in range(PA):
            ops.append(f"s_add_u32 m0, s50, {slot*SS + NW*i*1024}\ns_nop 0\n"
                       f"buffer_load_dwordx4 v{VDA+i}, s[32:35], s48 offen lds")
        for i in range(PB):
            ops.append(f"s_add_u32 m0, s50, {slot*SS + BM*64 + NW*i*1024}\ns_nop 0\n"
                       f"buffer_load_dwordx4 v{VDB+i}, s[36:39], s48 offen lds")
        return ops

    a("s_mov_b32 s48, 0")
    for s in range(NB):
        for op in dma_ops(s):
            a(op)
        a("s_add_u32 s48, s48, 64")
    a(f"""
    s_and_b32 s44, s3, {WM-1}
    s_lshr_b32 s45, s3, {WM.bit_length()-1}
    s_mul_i32 s44, s44, {BM//WM}
    s_mul_i32 s45, s45, {BN//WN}
    v_and_b32 v2, 31, v1
    v_lshrrev_b32 v3, 5, v1
    v_lshrrev_b32 v{F0}, 2, v1
    v_xor_b32 v{F0}, v{F0}, v3
    v_and_b32 v{F0}, 3, v{F0}
    v_lshlrev_b32 v{F0}, 4, v{F0}
    v_add_u32 v{VR}, s44, v2
    v_lshlrev_b32 v{VR}, 6, v{VR}
    v_add_u32 v{VR}, v{VR}, v{F0}
    v_xor_b32 v{VR+1}, 32, v{VR}
    v_add_u32 v{VR+2}, s45, v2
    v_lshlrev_b32 v{VR+2}, 6, v{VR+2}
    v_add_u32 v{VR+2}, v{VR+2}, v{F0}
    v_add_u32 v{VR+2}, {BM*64}, v{VR+2}
    v_xor_b32 v{VR+3}, 32, v{VR+2}
    """)
    for g in range(1, ngrp):
        for r in range(4):
            a(f"v_add_u32 v{VR+4*g+r}, {g*GS*SS}, v{VR+r}")
    for r in range(TM * TN * 16):
        a(f"v_mov_b32 v{ACC+r}, 0")

    def read_ops(slot, ks, F):
        g, sl = slot // GS, slot % GS
        ops = []
        for t in range(TM):
            ops.append(f"ds_read_b128 v[{F+4*t}:{F+4*t+3}], v{VR+4*g+ks} offset:{sl*SS + t*2048}")
        for t in range(TN):
            ops.append(f"ds_read_b128 v[{F+4*TM+4*t}:{F+4*TM+4*t+3}], v{VR+4*g+2+ks} offset:{sl*SS + t*2048}")
        return ops

    def mfma_ops(F):
        ops = []
        for tn in range(TN):
            for tm in range(TM):
                cc = ACC + (tm * TN + tn) * 16
                ops.append(f"v_mfma_f32_32x32x16_bf16 v[{cc}:{cc+15}], v[{F+4*tm}:{F+4*tm+3}], "
                           f"v[{F+4*TM+4*tn}:{F+4*TM+4*tn+3}], v[{cc}:{cc+15}]")
        return ops

    def interleave(ms, side):
        per = (len(side) + len(ms) - 1) // len(ms) if side else 0
        q = list(side)
        for m in ms:
            a(m)
            for _ in range(per):
                if q:
                    a(q.pop(0))
        for op in q:
            a(op)

    def stage(slot, dma, vm, last):
        a("s_waitcnt lgkmcnt(0)")
        interleave(mfma_ops(F0), read_ops(slot, 1, F1))
        if last:
            a("s_waitcnt lgkmcnt(0)")
            interleave(mfma_ops(F1), [])
            return
        a(f"s_waitcnt vmcnt({vm}) lgkmcnt(0)")
        a("s_barrier")
        side = read_ops((slot + 1) % NB, 0, F0)
        if dma:
            side += dma_ops(slot)
        interleave(mfma_ops(F1), side)
        if dma:
            a("s_add_u32 s48, s48, 64")

    a(f"s_waitcnt vmcnt({(NB-1)*P})")
    a("s_barrier")
    for op in read_ops(0, 0, F0):
        a(op)
    nit = (NS - NB) // NB
    if nit:
        a(f"s_mov_b32 s49, {nit}")
        a.label(f".{J}_loop")
        for s in range(NB):
            stage(s, True, (NB - 2) * P, False)
        a("s_sub_u32 s49, s49, 1")
        a("s_cmp_lg_u32 s49, 0")
        a(f"s_cbranch_scc1 .{J}_loop")
    for s in range(NB):
        stage(s, False, max(NB - 2 - s, 0) * P, s == NB - 1)
    a(f"""
    s_mul_i32 s46, s20, {BM}
    s_add_u32 s46, s46, s44
    s_mul_i32 s47, s21, {BN}
    s_add_u32 s47, s47, s45
    s_mov_b32 s24, {ldo}
    v_add_u32 v4, s47, v2
    v_mul_lo_u32 v4, v4, s24
    v_lshlrev_b32 v5, 4, v3
    v_add_u32 v4, v4, v5
    s_lshl_b32 s49, s46, 1
    s_add_u32 s49, s49, {j['O'][1]}
    v_add_u32 v4, s49, v4
    s_nop 15
    """)
    if 'mlimit' in j:
        a(f"s_cmp_ge_u32 s46, {j['mlimit']}")
        a(f"s_cbranch_scc1 .{L}_end")
    cnt = 0
    for tn in range(TN):
        for tm in range(TM):
            cc = ACC + (tm * TN + tn) * 16
            p = F0 + 8 * (cnt % 3)
            cnt += 1
            for q in range(8):
                a(f"v_cvt_pk_bf16_f32 v{p+q}, v{cc+2*q}, v{cc+2*q+1}")
            a("s_nop 1")
            for pr in range(2):
                for w in range(2):
                    a(f"v_permlane32_swap_b32 v{p+4*pr+w}, v{p+4*pr+2+w}")
            a("s_nop 1")
            a(f"buffer_store_dwordx4 v[{p}:{p+3}], v4, s[40:43], 0 offen offset:{tm*64}")
            a(f"buffer_store_dwordx4 v[{p+4}:{p+7}], v4, s[40:43], 0 offen offset:{tm*64+32}")
        if tn < TN - 1:
            a(f"v_add_u32 v4, {32*ldo}, v4")
    a("s_endpgm")
```

```python
import sys, re

NAME = "concat_heads__memory_aug_recurrent_mem_tr__sliding_local_dilated__prompt"

WS_WT   = 0x0000000
WS_WOT  = 0x1000000
WS_BWT  = 0x1600000
WS_BWOT = 0x1900000
WS_QK   = 0x2000000
WS_VT   = 0x4000000
WS_BQ   = 0x5000000
WS_OA   = 0x6000000
WS_OB   = 0x7000000
WS_KM   = 0x7400000
WS_VMT  = 0x7800000
WS_EX2  = 0x8000000
WS_EX3  = 0x8400000
WS_ZERO_BYTES = 0x410000
WS_BYTES = 0x10000000

ARG = dict(A_x=0, mem0=8, Wq=16, Wk=24, Wv=32, Wo=40, seg=48, B_x=56, wqkv=64, wo=72, out=80, dbg=88, ws=96)
ARG_BYTES = dict(A_x=2621440, mem0=10240, Wq=5242880, Wk=5242880, Wv=5242880, Wo=5242880,
                 B_x=2621440, wqkv=2457600, wo=819200, out=5242880, ws=WS_BYTES)


class Asm:
    def __init__(self):
        self.lines = []
        self.uid = 0

    def __call__(self, s):
        for ln in s.strip("\n").split("\n"):
            ln = ln.strip()
            if ln.startswith("buffer_") or ln.startswith("global_"):
                mo = re.search(r"offset:(\d+)", ln)
                assert not mo or int(mo.group(1)) < 4096, ln
            self.lines.append("    " + ln)

    def label(self, name):
        self.lines.append(name + ":")

    def new_label(self, base="L"):
        self.uid += 1
        return f".{base}_{self.uid}"

    def raw(self, s):
        self.lines.append(s)


def magic_div(d, maxv):
    for sh in (16, 20, 24):
        m = (1 << sh) // d + 1
        if all((t * m) >> sh == t // d for t in range(maxv)) and maxv * m < (1 << 31):
            return m, sh
    raise ValueError((d, maxv))


def s_div(a, dst, src, d, maxv):
    if d & (d - 1) == 0:
        a(f"s_lshr_b32 {dst}, {src}, {d.bit_length() - 1}")
    else:
        m, sh = magic_div(d, maxv)
        a(f"s_mul_i32 {dst}, {src}, {m}")
        a(f"s_lshr_b32 {dst}, {dst}, {sh}")


def srd(a, sd, sp, nbytes):
    a(f"s_mov_b32 s{sd}, s{sp}")
    a(f"s_mov_b32 s{sd+1}, s{sp+1}")
    a(f"s_mov_b32 s{sd+2}, {nbytes}")
    a(f"s_mov_b32 s{sd+3}, 0x00020000")


KERNELS = []
LAUNCHES = []


def kernel_begin(a, label):
    a.raw(f".globl {label}")
    a.raw(".p2align 8")
    a.raw(f".type {label},@function")
    a.label(label)


def gen_k0(a):
    label = "k0_transpose_kernel"
    jobs = [
        ("Wq", 10, 64, 8192, WS_WT, 1280, 'n'),
        ("Wk", 10, 64, 8192, WS_WT + 4096 * 1280, 1280, 'n'),
        ("Wv", 10, 64, 8192, WS_WT + 8192 * 1280, 1280, 'n'),
        ("Wo", 64, 10, 1280, WS_WOT, 8192, 'k'),
        ("wqkv", 10, 30, 3840, WS_BWT, 1280, 'n'),
        ("wo", 10, 10, 1280, WS_BWOT, 1280, 'n'),
    ]
    ntiles = sum(j[1] * j[2] for j in jobs)
    assert ntiles % 4 == 0
    nwg_t = ntiles // 4
    nwg_z = WS_ZERO_BYTES // 16384
    nwg = nwg_t + nwg_z
    kernel_begin(a, label)
    a(f"""
    s_cmp_ge_u32 s2, {nwg}
    s_cbranch_scc1 .k0_end
    s_load_dwordx2 s[4:5], s[0:1], {ARG['ws']}
    s_waitcnt lgkmcnt(0)
    """)
    srd(a, 12, 4, WS_BYTES)
    a(f"""
    s_cmp_lt_u32 s2, {nwg_t}
    s_cbranch_scc1 .k0_tr
    s_sub_u32 s3, s2, {nwg_t}
    s_lshl_b32 s3, s3, 14
    s_add_u32 s3, s3, {WS_EX2}
    v_lshlrev_b32 v1, 4, v0
    v_add_u32 v1, s3, v1
    v_mov_b32 v4, 0
    v_mov_b32 v5, 0
    v_mov_b32 v6, 0
    v_mov_b32 v7, 0
    buffer_store_dwordx4 v[4:7], v1, s[12:15], 0 offen
    v_add_u32 v1, 0x1000, v1
    buffer_store_dwordx4 v[4:7], v1, s[12:15], 0 offen
    v_add_u32 v1, 0x1000, v1
    buffer_store_dwordx4 v[4:7], v1, s[12:15], 0 offen
    v_add_u32 v1, 0x1000, v1
    buffer_store_dwordx4 v[4:7], v1, s[12:15], 0 offen
    s_waitcnt vmcnt(0)
    s_endpgm
    """)
    a.label(".k0_tr")
    a("""
    v_lshrrev_b32 v1, 6, v0
    s_nop 1
    v_readfirstlane_b32 s3, v1
    s_lshl_b32 s6, s2, 2
    s_add_u32 s6, s6, s3
    """)
    base = 0
    for i, (arg, KT, NT, sld, doff, dld, order) in enumerate(jobs):
        n = KT * NT
        nxt = f".k0_j{i+1}"
        a(f"s_cmp_ge_u32 s6, {base + n}")
        a(f"s_cbranch_scc1 {nxt}")
        a(f"s_sub_u32 s7, s6, {base}")
        a(f"s_load_dwordx2 s[8:9], s[0:1], {ARG[arg]}")
        if order == 'n':
            s_div(a, "s20", "s7", NT, n)
            a(f"s_mul_i32 s21, s20, {NT}")
            a("s_sub_u32 s21, s7, s21")
        else:
            s_div(a, "s21", "s7", KT, n)
            a(f"s_mul_i32 s20, s21, {KT}")
            a("s_sub_u32 s20, s7, s20")
        a(f"s_mov_b32 s22, {sld}")
        a(f"s_mov_b32 s23, {dld}")
        a(f"s_mov_b32 s24, {doff}")
        a(f"s_mov_b32 s25, {ARG_BYTES[arg]}")
        a("s_branch .k0_go")
        a.label(nxt)
        base += n
    a("s_endpgm")
    a.label(".k0_go")
    a("""
    s_waitcnt lgkmcnt(0)
    s_mov_b32 s16, s8
    s_mov_b32 s17, s9
    s_mov_b32 s18, s25
    s_mov_b32 s19, 0x00020000
    v_and_b32 v1, 63, v0
    v_and_b32 v2, 7, v1
    v_lshrrev_b32 v3, 3, v1
    """)
    a("""
    s_lshl_b32 s26, s20, 6
    v_lshlrev_b32 v4, 3, v3
    v_add_u32 v4, s26, v4
    v_mul_lo_u32 v5, v4, s22
    s_lshl_b32 s27, s21, 6
    v_lshlrev_b32 v6, 3, v2
    v_add_u32 v6, s27, v6
    v_lshlrev_b32 v7, 1, v6
    v_add_u32 v5, v5, v7
    v_mul_lo_u32 v8, v6, s23
    v_lshlrev_b32 v9, 1, v4
    v_add_u32 v8, v8, v9
    v_add_u32 v8, s24, v8
    """)
    for r in range(8):
        a(f"buffer_load_dwordx4 v[{16+4*r}:{19+4*r}], v5, s[16:19], 0 offen")
        if r < 7:
            a("v_add_u32 v5, s22, v5")
    a("s_mov_b32 s28, 0x05040100")
    a("s_mov_b32 s29, 0x07060302")
    a("s_waitcnt vmcnt(0)")
    for c in range(8):
        for q in range(4):
            sel = "s28" if c % 2 == 0 else "s29"
            a(f"v_perm_b32 v{48+4*c+q}, v{16+4*(2*q+1)+(c>>1)}, v{16+4*(2*q)+(c>>1)}, {sel}")
    for c in range(8):
        a(f"buffer_store_dwordx4 v[{48+4*c}:{51+4*c}], v8, s[12:15], 0 offen")
        if c < 7:
            a("v_add_u32 v8, s23, v8")
    a("s_waitcnt vmcnt(0)")
    a.label(".k0_end")
    a("s_endpgm")
    KERNELS.append((label, 80, 0))
    LAUNCHES.append((label, nwg, 256, 0))


def gen_gemm(a, label, jobs, TM, TN):
    nwg = sum(j['MT'] * j['NT'] for j in jobs)
    L = label.replace("_kernel", "")
    kernel_begin(a, label)
    a(f"""
    s_cmp_ge_u32 s2, {nwg}
    s_cbranch_scc1 .{L}_end
    """)
    base = 0
    for i, j in enumerate(jobs):
        n = j['MT'] * j['NT']
        nxt = f".{L}_j{i+1}"
        a(f"s_cmp_ge_u32 s2, {base + n}")
        a(f"s_cbranch_scc1 {nxt}")
        a(f"s_sub_u32 s7, s2, {base}")
        a(f"s_load_dwordx2 s[8:9], s[0:1], {ARG[j['A'][0]]}")
        a(f"s_load_dwordx2 s[10:11], s[0:1], {ARG[j['B'][0]]}")
        a(f"s_load_dwordx2 s[12:13], s[0:1], {ARG[j['O'][0]]}")
        s_div(a, "s21", "s7", j['MT'], n)
        a(f"s_mul_i32 s20, s21, {j['MT']}")
        a("s_sub_u32 s20, s7, s20")
        a(f"s_mov_b32 s22, {j['lda']}")
        a(f"s_mov_b32 s23, {j['ldb']}")
        a(f"s_mov_b32 s24, {j['ldo']}")
        a(f"s_mov_b32 s25, {j['A'][1]}")
        a(f"s_mov_b32 s26, {j['B'][1]}")
        a(f"s_mov_b32 s27, {j['O'][1]}")
        a(f"s_mov_b32 s28, {j['K'] * 2}")
        a(f"s_mov_b32 s29, {ARG_BYTES[j['A'][0]]}")
        a(f"s_mov_b32 s30, {ARG_BYTES[j['B'][0]]}")
        a(f"s_mov_b32 s31, {ARG_BYTES[j['O'][0]]}")
        a(f"s_branch .{L}_go")
        a.label(nxt)
        base += n
    a("s_endpgm")
    a.label(f".{L}_go")
    a("""
    s_waitcnt lgkmcnt(0)
    s_mov_b32 s32, s8
    s_mov_b32 s33, s9
    s_mov_b32 s34, s29
    s_mov_b32 s35, 0x00020000
    s_mov_b32 s36, s10
    s_mov_b32 s37, s11
    s_mov_b32 s38, s30
    s_mov_b32 s39, 0x00020000
    s_mov_b32 s40, s12
    s_mov_b32 s41, s13
    s_mov_b32 s42, s31
    s_mov_b32 s43, 0x00020000
    """)
    a(f"""
    v_lshrrev_b32 v1, 6, v0
    s_nop 1
    v_readfirstlane_b32 s3, v1
    s_and_b32 s44, s3, 1
    s_lshr_b32 s45, s3, 1
    s_mul_i32 s46, s20, {64*TM}
    s_mul_i32 s44, s44, {32*TM}
    s_add_u32 s46, s46, s44
    s_mul_i32 s47, s21, {64*TN}
    s_mul_i32 s45, s45, {32*TN}
    s_add_u32 s47, s47, s45
    v_and_b32 v1, 31, v0
    v_bfe_u32 v2, v0, 5, 1
    v_lshlrev_b32 v3, 5, v2
    """)
    VA, VB = 4, 4 + TM
    for t in range(TM):
        a(f"v_add_u32 v{VA+t}, s46, v1")
        if t:
            a(f"v_add_u32 v{VA+t}, {32*t}, v{VA+t}")
        a(f"v_mul_lo_u32 v{VA+t}, v{VA+t}, s22")
        a(f"v_add_u32 v{VA+t}, v{VA+t}, v3")
        a(f"v_add_u32 v{VA+t}, s25, v{VA+t}")
    for t in range(TN):
        a(f"v_add_u32 v{VB+t}, s47, v1")
        if t:
            a(f"v_add_u32 v{VB+t}, {32*t}, v{VB+t}")
        a(f"v_mul_lo_u32 v{VB+t}, v{VB+t}, s23")
        a(f"v_add_u32 v{VB+t}, v{VB+t}, v3")
        a(f"v_add_u32 v{VB+t}, s26, v{VB+t}")
    ACC = 16
    NACC = TM * TN * 16
    FR = ACC + NACC
    FSZ = (TM + TN) * 8
    for r in range(NACC):
        a(f"v_mov_b32 v{ACC+r}, 0")

    def loads(buf):
        b = FR + buf * FSZ
        for t in range(TM):
            a(f"buffer_load_dwordx4 v[{b+8*t}:{b+8*t+3}], v{VA+t}, s[32:35], s48 offen")
            a(f"buffer_load_dwordx4 v[{b+8*t+4}:{b+8*t+7}], v{VA+t}, s[32:35], s48 offen offset:16")
        b += 8 * TM
        for t in range(TN):
            a(f"buffer_load_dwordx4 v[{b+8*t}:{b+8*t+3}], v{VB+t}, s[36:39], s48 offen")
            a(f"buffer_load_dwordx4 v[{b+8*t+4}:{b+8*t+7}], v{VB+t}, s[36:39], s48 offen offset:16")

    def mfmas(buf):
        b = FR + buf * FSZ
        for h in range(2):
            for tm in range(TM):
                for tn in range(TN):
                    c = ACC + (tm * TN + tn) * 16
                    ra = b + 8 * tm + 4 * h
                    rb = b + 8 * TM + 8 * tn + 4 * h
                    a(f"v_mfma_f32_32x32x16_bf16 v[{c}:{c+15}], v[{ra}:{ra+3}], v[{rb}:{rb+3}], v[{c}:{c+15}]")

    NL = 2 * (TM + TN)
    a("s_mov_b32 s48, 0")
    loads(0)
    a.label(f".{L}_loop")
    a("s_add_u32 s48, s48, 64")
    loads(1)
    a(f"s_waitcnt vmcnt({NL})")
    mfmas(0)
    a("s_add_u32 s48, s48, 64")
    a("s_cmp_ge_u32 s48, s28")
    a(f"s_cbranch_scc1 .{L}_last")
    loads(0)
    a(f"s_waitcnt vmcnt({NL})")
    mfmas(1)
    a(f"s_branch .{L}_loop")
    a.label(f".{L}_last")
    a("s_waitcnt vmcnt(0)")
    mfmas(1)
    a("s_nop 15")
    a("s_nop 15")
    a(f"""
    v_add_u32 v4, s47, v1
    v_mul_lo_u32 v4, v4, s24
    v_lshlrev_b32 v5, 4, v2
    v_add_u32 v4, v4, v5
    s_lshl_b32 s49, s46, 1
    s_add_u32 s49, s49, s27
    v_add_u32 v4, s49, v4
    s_lshl_b32 s50, s24, 5
    """)
    for tn in range(TN):
        for tm in range(TM):
            c = ACC + (tm * TN + tn) * 16
            p = FR
            for q in range(8):
                a(f"v_cvt_pk_bf16_f32 v{p+q}, v{c+2*q}, v{c+2*q+1}")
            a("s_nop 1")
            for pr in range(2):
                for w in range(2):
                    a(f"v_permlane32_swap_b32 v{p+4*pr+w}, v{p+4*pr+2+w}")
            a("s_nop 1")
            a(f"buffer_store_dwordx4 v[{p}:{p+3}], v4, s[40:43], 0 offen offset:{tm*64}")
            a(f"buffer_store_dwordx4 v[{p+4}:{p+7}], v4, s[40:43], 0 offen offset:{tm*64+32}")
            a("s_nop 1")
        if tn < TN - 1:
            a("v_add_u32 v4, s50, v4")
    a("s_waitcnt vmcnt(0)")
    a.label(f".{L}_end")
    a("s_endpgm")
    KERNELS.append((label, FR + 2 * FSZ, 0))
    LAUNCHES.append((label, nwg, 256, 0))


def emit(path):
    a = Asm()
    gen_k0(a)
    import gen_gemm2
    me = sys.modules[__name__]
    gen_gemm2.gen_gemm2(a, me, "k1_gemm_kernel", [
        dict(A=('ws', WS_WT), lda=1280, B=('A_x', 0), ldb=1280, K=640, O=('ws', WS_QK), ldo=16384,
             split='m', xm=4, xn=8, NB=4),
        dict(A=('A_x', 0), lda=1280, B=('ws', WS_WT + 8192 * 1280), ldb=1280, K=640, O=('ws', WS_VT), ldo=4096,
             split='n', xm=8, xn=2, NB=4),
        dict(A=('ws', WS_BWT), lda=1280, B=('B_x', 0), ldb=1280, K=640, O=('ws', WS_BQ), ldo=3840,
             split='m', xm=1, xn=8, NB=4, mlimit=1920),
    ], 256, 256, 2, 4)
    try:
        import gen_chain
        gen_chain.gen_all(a, sys.modules[__name__])
    except ImportError:
        pass
    gen_gemm2.gen_gemm2(a, me, "k4_gemm_kernel", [
        dict(A=('ws', WS_WOT), lda=8192, B=('ws', WS_OA), ldb=8192, K=4096, O=('out', 0), ldo=2560,
             split='n', xm=5, xn=4, NB=8),
        dict(A=('ws', WS_BWOT), lda=1280, B=('ws', WS_OB), ldb=1280, K=640, O=('out', 1280), ldo=2560,
             split='n', xm=5, xn=4, NB=5),
    ], 128, 64, 2, 2)

    hdr = open(f"cdna_kernels/{NAME}.s.ref").read().split("; Override launch geometry")[0]
    out = [hdr.rstrip("\n")]
    for (lab, g, b, lds) in LAUNCHES:
        out.append(f"; @launch kernel={lab} grid=({g},1,1) block=({b},1,1) lds={lds}")
    out.append('.amdgcn_target "amdgcn-amd-amdhsa--gfx950"')
    out.append(".text")
    out += a.lines
    out.append('.section .rodata,"a"')
    for (lab, vg, ag) in KERNELS:
        acc_off = (vg + 3) // 4 * 4
        tot = acc_off + ag
        out.append(".p2align 6")
        out.append(f".amdhsa_kernel {lab}")
        out.append(f"  .amdhsa_next_free_vgpr {tot}")
        out.append("  .amdhsa_next_free_sgpr 102")
        out.append(f"  .amdhsa_accum_offset {acc_off}")
        out.append("  .amdhsa_group_segment_fixed_size 0")
        out.append("  .amdhsa_kernarg_size 104")
        out.append("  .amdhsa_user_sgpr_count 2")
        out.append("  .amdhsa_user_sgpr_kernarg_segment_ptr 1")
        out.append("  .amdhsa_system_sgpr_workgroup_id_x 1")
        out.append(".end_amdhsa_kernel")
    open(path, "w").write("\n".join(out) + "\n")


if __name__ == "__main__":
    emit(sys.argv[1] if len(sys.argv) > 1 else f"cdna_kernels/{NAME}.s")
```

```python
WOL, WOL_LD = 0, 144
MEML, MEML_LD = 92160, 1296
QL, QL_LD = 112896, 272
KL = 117248
VL, VL_LD = 130304, 80
OL, OL_LD = 135424, 144
RED = 137728
LDS_BYTES = 139776
NCH, NRED = 64, 80
SPIN_MAX = 1 << 21
import os
INSTR = int(os.environ.get('INSTR', '0'))
CP = int(os.environ.get('CP', '4'))
RP = int(os.environ.get('RP', '4'))
CS = int(os.environ.get('CS', '0'))
RS = int(os.environ.get('RS', '0'))


def stamp(a, i, stepreg="s19", step=20):
    if not INSTR:
        return
    lb = a.new_label("st")
    a(f"s_cmp_eq_u32 {stepreg}, {step}")
    a(f"s_cbranch_scc0 {lb}")
    a(f"s_memtime s[{60+2*i}:{61+2*i}]")
    a("s_waitcnt lgkmcnt(0)")
    a.label(lb)


def rstamp(a, i, stepreg="s19", step=20, wait=False):
    if INSTR < 2:
        return
    lb = a.new_label("rt")
    a(f"s_cmp_eq_u32 {stepreg}, {step}")
    a(f"s_cbranch_scc0 {lb}")
    if wait:
        a("s_waitcnt vmcnt(0)")
    a("s_memrealtime s[80:81]")
    a("s_waitcnt lgkmcnt(0)")
    a(f"s_mov_b32 s{84+i}, s80")
    a.label(lb)


def dump_rt(a, G):
    if INSTR < 2:
        return
    a("s_lshl_b32 s28, s2, 2")
    a("s_add_u32 s28, s28, s18")
    a("s_lshl_b32 s28, s28, 5")
    a("s_add_u32 s28, s28, 0x9000000")
    a("v_mov_b32 v1, s28")
    for i in range(4):
        a(f"v_mov_b32 v2, s{84+i}")
        a(f"buffer_store_dword v2, v1, s[8:11], 0 offen offset:{4*i}")
    a("s_waitcnt vmcnt(0)")


def dump_stamps(a, G, wg, base, n, extra):
    if not INSTR:
        return
    lb = a.new_label("ds")
    a(f"s_cmp_eq_u32 s2, {wg}")
    a(f"s_cbranch_scc0 {lb}")
    a("s_cmp_eq_u32 s18, 0")
    a(f"s_cbranch_scc0 {lb}")
    a(f"s_load_dwordx2 s[4:5], s[0:1], {G.ARG['dbg']}")
    a("s_waitcnt lgkmcnt(0)")
    G.srd(a, 12, 4, 256)
    a("v_mov_b32 v1, 0")
    for i in range(n):
        a(f"v_mov_b32 v2, s{60+2*i}")
        a(f"buffer_store_dword v2, v1, s[12:15], 0 offen offset:{base+4*i}")
    a(f"v_mov_b32 v2, {extra}")
    a(f"buffer_store_dword v2, v1, s[12:15], 0 offen offset:{base+4*n}")
    a("s_waitcnt vmcnt(0)")
    a.label(lb)


def wreg(tile, ks):
    if tile < 3:
        b = tile * 80 + ks * 4
        return f"a[{b}:{b+3}]"
    if tile == 3:
        if ks < 4:
            b = 240 + ks * 4
            return f"a[{b}:{b+3}]"
        b = 112 + (ks - 4) * 4
        return f"v[{b}:{b+3}]"
    b = 176 + ks * 4
    return f"v[{b}:{b+3}]"


def v_div(a, dst, src, d, maxv, G):
    m, sh = G.magic_div(d, maxv)
    a(f"s_mov_b32 s90, {m}")
    a(f"v_mul_lo_u32 {dst}, {src}, s90")
    a(f"v_lshrrev_b32 {dst}, {sh}, {dst}")


def xlane_reduce(a, op, x, t1, t2):
    a(f"v_mov_b32 {t1}, {x}")
    a(f"v_mov_b32 {t2}, {x}")
    a("s_nop 1")
    a(f"v_permlane16_swap_b32 {t1}, {t2}")
    a("s_nop 1")
    a(f"{op} {x}, {t1}, {t2}")
    a(f"v_mov_b32 {t1}, {x}")
    a(f"v_mov_b32 {t2}, {x}")
    a("s_nop 1")
    a(f"v_permlane32_swap_b32 {t1}, {t2}")
    a("s_nop 1")
    a(f"{op} {x}, {t1}, {t2}")


def round_bf16_pair(a, r0, r1, t):
    a(f"v_cvt_pk_bf16_f32 {t}, {r0}, {r1}")
    a(f"v_lshlrev_b32 {r0}, 16, {t}")
    a(f"v_and_b32 {r1}, 0xffff0000, {t}")


def gen_chain(a, G):
    label = "k2_chain_kernel"
    G.kernel_begin(a, label)
    a(f"""
    s_cmp_ge_u32 s2, {NCH + NRED}
    s_cbranch_scc1 .k2_work
    s_load_dwordx2 s[4:5], s[0:1], {G.ARG['ws']}
    s_load_dwordx2 s[6:7], s[0:1], {G.ARG['mem0']}
    v_lshrrev_b32 v1, 6, v0
    s_nop 1
    v_readfirstlane_b32 s18, v1
    v_and_b32 v1, 63, v0
    v_and_b32 v2, 15, v1
    v_lshrrev_b32 v3, 4, v1
    s_waitcnt lgkmcnt(0)
    """)
    G.srd(a, 8, 4, G.WS_BYTES)
    G.srd(a, 12, 6, G.ARG_BYTES['mem0'])
    a(f"""
    s_cmp_ge_u32 s2, {NCH}
    s_cbranch_scc1 .k2_reducer
    s_lshr_b32 s16, s2, 1
    s_and_b32 s17, s2, 1
    s_mov_b32 s22, 0x00ff00ff
    s_mov_b32 s23, 0x00ff00ff
    s_mov_b32 s24, 0xffffffff
    s_mov_b32 s25, 0
    s_mov_b32 s26, 0x07060302
    s_mov_b32 s51, 4096
    s_mov_b32 s52, 8192
    s_mov_b32 s53, 12288
    s_mov_b32 s54, 16384
    """)
    a("""
    s_lshl_b32 s28, s16, 7
    s_lshl_b32 s29, s18, 5
    s_add_u32 s28, s28, s29
    v_add_u32 v4, s28, v2
    v_mul_u32_u24 v4, 1280, v4
    v_lshlrev_b32 v5, 4, v3
    v_add_u32 v4, v4, v5
    """)
    a(f"v_add_u32 v4, {G.WS_WT}, v4")
    a(f"v_add_u32 v5, {16*1280}, v4")
    a(f"v_add_u32 v6, {4096*1280}, v4")
    a(f"v_add_u32 v7, {(4096+16)*1280}, v4")
    a("""
    s_lshl_b32 s28, s16, 7
    s_lshl_b32 s29, s17, 6
    s_add_u32 s28, s28, s29
    s_lshl_b32 s29, s18, 4
    s_add_u32 s28, s28, s29
    v_add_u32 v8, s28, v2
    v_mul_u32_u24 v8, 1280, v8
    v_lshlrev_b32 v9, 4, v3
    v_add_u32 v8, v8, v9
    """)
    a(f"v_add_u32 v8, {G.WS_WT + 8192*1280}, v8")
    for t in range(5):
        for ks in range(20):
            a(f"buffer_load_dwordx4 {wreg(t, ks)}, v{4+t}, s[8:11], 0 offen offset:{ks*64}")
        if t % 2 == 1:
            a("s_waitcnt vmcnt(0)")
    a(f"""
    v_lshrrev_b32 v4, 3, v0
    v_and_b32 v5, 7, v0
    v_lshlrev_b32 v6, 13, v4
    v_lshlrev_b32 v7, 4, v5
    v_add_u32 v6, v6, v7
    s_lshl_b32 s28, s16, 8
    s_lshl_b32 s29, s17, 7
    s_add_u32 s28, s28, s29
    s_add_u32 s28, s28, {G.WS_WOT}
    v_add_u32 v6, s28, v6
    v_mul_u32_u24 v8, {WOL_LD}, v4
    v_add_u32 v8, v8, v7
    s_mov_b32 s28, 0
    """)
    for n in range(20):
        a(f"buffer_load_dwordx4 v[{16+4*n}:{19+4*n}], v6, s[8:11], s28 offen")
        a("s_add_u32 s28, s28, 0x40000")
    a("s_waitcnt vmcnt(0)")
    for n in range(20):
        if n == 10:
            a(f"v_add_u32 v8, {10*32*WOL_LD}, v8")
        a(f"ds_write_b128 v8, v[{16+4*n}:{19+4*n}] offset:{WOL + (n%10)*32*WOL_LD}")
    a(f"""
    v_mov_b32 v16, 0
    v_mov_b32 v17, 0
    v_mov_b32 v18, 0
    v_mov_b32 v19, 0
    v_lshlrev_b32 v4, 4, v0
    v_add_u32 v4, {MEML + 8*MEML_LD}, v4
    ds_write_b128 v4, v[16:19]
    ds_write_b128 v4, v[16:19] offset:4096
    v_cmp_gt_u32 vcc, {648-512}, v0
    s_and_saveexec_b64 s[30:31], vcc
    ds_write_b128 v4, v[16:19] offset:8192
    s_mov_b64 exec, s[30:31]
    """)
    a(f"""
    v_mul_u32_u24 v4, {MEML_LD}, v2
    v_lshlrev_b32 v26, 4, v3
    v_add_u32 v4, v4, v26
    v_add_u32 v4, {MEML}, v4
    v_lshlrev_b32 v5, 4, v0
    v_add_u32 v5, {G.WS_EX3}, v5
    """)
    for n in range(5):
        a(f"v_add_u32 v27, {n*256}, v0")
        v_div(a, "v28", "v27", 160, 1280, G)
        a("v_mul_u32_u24 v29, 160, v28")
        a("v_sub_u32 v29, v27, v29")
        a(f"v_mul_u32_u24 v28, {MEML_LD}, v28")
        a("v_lshlrev_b32 v29, 3, v29")
        a(f"v_add_u32 v{6+n}, v28, v29")
        a(f"v_add_u32 v{6+n}, {MEML}, v{6+n}")
    a(f"""
    v_mul_u32_u24 v27, {QL_LD}, v2
    v_lshlrev_b32 v28, 3, v3
    s_lshl_b32 s28, s18, 6
    v_add_u32 v29, v27, v28
    v_add_u32 v29, s28, v29
    v_add_u32 v11, {QL}, v29
    v_add_u32 v12, {KL + 32*QL_LD}, v29
    v_add_u32 v13, v27, v26
    v_add_u32 v14, {KL}, v13
    v_add_u32 v13, {QL}, v13
    s_lshl_b32 s28, s18, 4
    v_add_u32 v15, s28, v2
    v_mul_u32_u24 v15, {VL_LD}, v15
    v_add_u32 v15, v15, v28
    v_add_u32 v15, {VL}, v15
    v_mul_u32_u24 v27, {OL_LD}, v2
    s_lshl_b32 s28, s18, 5
    v_add_u32 v16, v27, v28
    v_add_u32 v16, s28, v16
    v_add_u32 v16, {OL}, v16
    v_add_u32 v17, v27, v26
    v_add_u32 v17, {OL}, v17
    s_mul_i32 s28, s18, 160
    v_add_u32 v18, s28, v2
    v_mul_u32_u24 v18, {WOL_LD}, v18
    v_add_u32 v18, v18, v26
    """)
    a(f"""
    v_lshrrev_b32 v27, 1, v3
    v_lshrrev_b32 v28, 3, v2
    v_lshlrev_b32 v28, 1, v28
    v_add_u32 v27, v27, v28
    s_mul_i32 s28, s18, 20
    v_add_u32 v27, s28, v27
    v_lshlrev_b32 v27, 6, v27
    v_add_u32 v27, s2, v27
    v_lshlrev_b32 v27, 8, v27
    v_and_b32 v28, 7, v2
    v_lshlrev_b32 v28, 5, v28
    v_add_u32 v27, v27, v28
    v_and_b32 v28, 1, v3
    v_lshlrev_b32 v28, 4, v28
    v_add_u32 v27, v27, v28
    v_add_u32 v19, {G.WS_EX2}, v27
    s_mov_b32 s27, 0xffffffc0
    """)
    a(f"""
    v_lshrrev_b32 v27, 4, v0
    v_and_b32 v28, 15, v0
    v_lshlrev_b32 v28, 4, v28
    v_lshlrev_b32 v20, 14, v27
    v_add_u32 v20, v20, v28
    s_lshl_b32 s28, s16, 8
    s_add_u32 s28, s28, {G.WS_QK + 8192}
    v_add_u32 v20, s28, v20
    v_mul_u32_u24 v21, {QL_LD}, v27
    v_add_u32 v21, v21, v28
    v_add_u32 v21, {KL}, v21
    v_lshrrev_b32 v27, 2, v0
    v_and_b32 v28, 3, v0
    v_lshlrev_b32 v28, 4, v28
    s_lshl_b32 s28, s16, 7
    s_lshl_b32 s29, s17, 6
    s_add_u32 s28, s28, s29
    v_add_u32 v22, s28, v27
    v_lshlrev_b32 v22, 12, v22
    v_add_u32 v22, v22, v28
    v_add_u32 v22, {G.WS_VT}, v22
    v_mul_u32_u24 v23, {VL_LD}, v27
    v_add_u32 v23, v23, v28
    v_add_u32 v23, {VL}, v23
    """)
    a(f"""
    s_lshl_b32 s28, s16, 3
    v_add_u32 v24, s28, v2
    v_lshlrev_b32 v24, 8, v24
    v_lshlrev_b32 v27, 3, v3
    v_add_u32 v24, v24, v27
    s_lshl_b32 s28, s18, 6
    s_add_u32 s28, s28, {G.WS_KM}
    v_add_u32 v24, s28, v24
    s_lshl_b32 s28, s16, 7
    s_lshl_b32 s29, s17, 6
    s_add_u32 s28, s28, s29
    s_lshl_b32 s29, s18, 4
    s_add_u32 s28, s28, s29
    v_add_u32 v25, s28, v2
    v_lshlrev_b32 v25, 4, v25
    v_add_u32 v25, v25, v27
    v_add_u32 v25, {G.WS_VMT}, v25
    """)
    a("v_lshlrev_b32 v27, 3, v0")
    for n in range(5):
        a(f"buffer_load_dwordx2 v[{68+2*n}:{69+2*n}], v27, s[12:15], {'0' if n < 2 else 's%d' % (50 + (n >> 1))} offen offset:{(n&1)*2048}")
    a("""
    s_mov_b32 s28, 0x40000
    buffer_load_dwordx4 v[28:31], v20, s[8:11], 0 offen
    buffer_load_dwordx4 v[32:35], v20, s[8:11], s28 offen
    buffer_load_dwordx4 v[36:39], v22, s[8:11], 0 offen
    s_waitcnt vmcnt(0)
    """)
    for n in range(5):
        a(f"ds_write_b64 v{6+n}, v[{68+2*n}:{69+2*n}]")
    a(f"""
    ds_write_b128 v21, v[28:31]
    ds_write_b128 v21, v[32:35] offset:{16*QL_LD}
    ds_write_b128 v23, v[36:39]
    s_mov_b32 s19, 0
    s_mov_b32 s40, 0x3fb8aa3b
    s_mov_b32 s41, 0x3db504f3
    """)
    a.label(".k2_step")
    a("""
    s_waitcnt lgkmcnt(0)
    s_barrier
    """)
    stamp(a, 0)
    a("""
    s_add_u32 s28, s19, 1
    s_min_u32 s28, s28, 63
    s_lshl_b32 s29, s28, 19
    s_add_u32 s30, s29, 0x40000
    s_lshl_b32 s31, s28, 6
    buffer_load_dwordx4 v[28:31], v20, s[8:11], s29 offen
    buffer_load_dwordx4 v[32:35], v20, s[8:11], s30 offen
    buffer_load_dwordx4 v[36:39], v22, s[8:11], s31 offen
    """)
    for ks in range(4):
        a(f"ds_read_b128 v[{60+4*ks}:{63+4*ks}], v4 offset:{ks*64}")
    for ks in range(20):
        b = 60 + 4 * (ks % 4)
        rem = min(3, 19 - ks)
        a(f"s_waitcnt lgkmcnt({rem})")
        for t in range(5):
            c = 40 + 4 * t
            cin = "0" if ks == 0 else f"v[{c}:{c+3}]"
            if t < 4:
                a(f"v_mfma_f32_16x16x32_bf16 v[{c}:{c+3}], {wreg(t, ks)}, v[{b}:{b+3}], {cin}")
            else:
                a(f"v_mfma_f32_16x16x32_bf16 v[{c}:{c+3}], v[{b}:{b+3}], {wreg(t, ks)}, {cin}")
        if ks + 4 < 20:
            a(f"ds_read_b128 v[{b}:{b+3}], v4 offset:{(ks+4)*64}")
    a("s_nop 7")
    a("s_nop 7")
    stamp(a, 1)
    for t in range(4):
        c = 40 + 4 * t
        a(f"v_cvt_pk_bf16_f32 v{60+2*t}, v{c}, v{c+1}")
        a(f"v_cvt_pk_bf16_f32 v{61+2*t}, v{c+2}, v{c+3}")
    a("v_cvt_pk_bf16_f32 v26, v56, v57")
    a("v_cvt_pk_bf16_f32 v27, v58, v59")
    a("""
    ds_write_b64 v11, v[60:61]
    ds_write_b64 v11, v[62:63] offset:32
    ds_write_b64 v12, v[64:65]
    ds_write_b64 v12, v[66:67] offset:32
    s_lshl_b32 s29, s19, 16
    s_mov_b64 exec, s[24:25]
    buffer_store_dwordx2 v[26:27], v25, s[8:11], s29 offen
    s_mov_b64 exec, s[22:23]
    s_cmp_eq_u32 s17, 0
    s_cbranch_scc0 .k2_nokm
    buffer_store_dwordx2 v[64:65], v24, s[8:11], s29 offen
    buffer_store_dwordx2 v[66:67], v24, s[8:11], s29 offen offset:32
    """)
    a.label(".k2_nokm")
    a("""
    s_mov_b64 exec, -1
    s_cmp_eq_u32 s19, 63
    s_cbranch_scc1 .k2_fin
    s_waitcnt lgkmcnt(0)
    s_barrier
    """)
    stamp(a, 2)
    for ks in range(4):
        a(f"ds_read_b128 v[{60+4*ks}:{63+4*ks}], v13 offset:{ks*64}")
    for ks in range(4):
        a(f"ds_read_b128 v[{40+4*ks}:{43+4*ks}], v14 offset:{ks*64}")
    for ks in range(4):
        a(f"ds_read_b128 v[{76+4*ks}:{79+4*ks}], v14 offset:{16*QL_LD + ks*64}")
    a(f"ds_read_b64 v[92:93], v15")
    a(f"ds_read_b64 v[94:95], v15 offset:32")
    a("s_waitcnt lgkmcnt(6)")
    for ks in range(4):
        cin = "0" if ks == 0 else "v[100:103]"
        a(f"v_mfma_f32_16x16x32_bf16 v[100:103], v[{40+4*ks}:{43+4*ks}], v[{60+4*ks}:{63+4*ks}], {cin}")
    for ks in range(4):
        a(f"ds_read_b128 v[{40+4*ks}:{43+4*ks}], v14 offset:{32*QL_LD + ks*64}")
    a("s_waitcnt lgkmcnt(6)")
    for ks in range(4):
        cin = "0" if ks == 0 else "v[104:107]"
        a(f"v_mfma_f32_16x16x32_bf16 v[104:107], v[{76+4*ks}:{79+4*ks}], v[{60+4*ks}:{63+4*ks}], {cin}")
    a("s_waitcnt lgkmcnt(0)")
    for ks in range(4):
        cin = "0" if ks == 0 else "v[108:111]"
        a(f"v_mfma_f32_16x16x32_bf16 v[108:111], v[{40+4*ks}:{43+4*ks}], v[{60+4*ks}:{63+4*ks}], {cin}")
    a("s_nop 7")
    a("s_nop 7")
    for p in range(6):
        round_bf16_pair(a, f"v{100+2*p}", f"v{101+2*p}", "v40")
    for r in range(12):
        a(f"v_mul_f32 v{100+r}, s41, v{100+r}")
    for p in range(6):
        round_bf16_pair(a, f"v{100+2*p}", f"v{101+2*p}", "v40")
    a("v_mov_b32 v41, 0xf149f2ca")
    a("v_cmp_gt_u32 vcc, 2, v3")
    a("s_nop 1")
    for r in range(4):
        a(f"v_cndmask_b32 v{108+r}, v41, v{108+r}, vcc")
    a("v_max3_f32 v42, v100, v101, v102")
    for r in range(3, 11, 2):
        a(f"v_max3_f32 v42, v42, v{100+r}, v{101+r}")
    a("v_max_f32 v42, v42, v111")
    xlane_reduce(a, "v_max_f32", "v42", "v43", "v44")
    for r in range(12):
        a(f"v_sub_f32 v{100+r}, v{100+r}, v42")
    for r in range(12):
        a(f"v_mul_f32 v{100+r}, s40, v{100+r}")
    for r in range(12):
        a(f"v_exp_f32 v{100+r}, v{100+r}")
    a("s_nop 1")
    a("v_add_f32 v42, v100, v101")
    for r in range(2, 12):
        a(f"v_add_f32 v42, v42, v{100+r}")
    xlane_reduce(a, "v_add_f32", "v42", "v43", "v44")
    a("v_rcp_f32 v42, v42")
    a("s_nop 1")
    for r in range(12):
        a(f"v_mul_f32 v{100+r}, v{100+r}, v42")
    for p in range(6):
        a(f"v_cvt_pk_bf16_f32 v{44+p}, v{100+2*p}, v{101+2*p}")
    a("s_nop 1")
    a("v_mfma_f32_16x16x16_bf16 v[52:55], v[92:93], v[44:45], 0")
    a("v_mfma_f32_16x16x16_bf16 v[52:55], v[94:95], v[46:47], v[52:55]")
    a("v_mfma_f32_16x16x16_bf16 v[52:55], v[26:27], v[48:49], v[52:55]")
    for f in range(4):
        a(f"ds_read_b128 v[{76+4*f}:{79+4*f}], v18 offset:{(f>>1)*16*WOL_LD + (f&1)*64}")
    a("s_nop 7")
    a("s_nop 3")
    a("v_cvt_pk_bf16_f32 v56, v52, v53")
    a("v_cvt_pk_bf16_f32 v57, v54, v55")
    a("ds_write_b64 v16, v[56:57]")
    stamp(a, 3)
    a("s_waitcnt lgkmcnt(0)")
    a("s_barrier")
    stamp(a, 4)
    a(f"""
    s_waitcnt vmcnt(0)
    ds_write_b128 v21, v[28:31]
    ds_write_b128 v21, v[32:35] offset:{16*QL_LD}
    ds_write_b128 v23, v[36:39]
    ds_read_b128 v[68:71], v17
    ds_read_b128 v[72:75], v17 offset:64
    """)
    a("s_add_u32 s20, s19, 1")
    a("v_mov_b32 v108, s20")
    a("s_mov_b32 s28, 0")

    def e2_store(p):
        c = 28 + 8 * p
        for r in range(4):
            a(f"v_mov_b32_dpp v{c+r}, v{c+4+r} row_ror:8 row_mask:0xf bank_mask:0xc")
        for r in range(4):
            a(f"v_bfi_b32 v{c+r}, s27, v{c+r}, v108")
        a(f"buffer_store_dwordx4 v[{c}:{c+3}], v19, s[8:11], s28 offen sc1")
        a("s_add_u32 s28, s28, 0x10000")

    for bt in range(5):
        cur = 76 + 16 * (bt & 1)
        nxt = 76 + 16 * ((bt + 1) & 1)
        if bt < 4:
            for f in range(4):
                a(f"ds_read_b128 v[{nxt+4*f}:{nxt+3+4*f}], v18 offset:{((bt+1)*2+(f>>1))*16*WOL_LD + (f&1)*64}")
            a("s_waitcnt lgkmcnt(4)")
        else:
            a("s_waitcnt lgkmcnt(0)")
        for tl in range(2):
            c = 28 + 4 * (bt * 2 + tl)
            a(f"v_mfma_f32_16x16x32_bf16 v[{c}:{c+3}], v[{cur+8*tl}:{cur+8*tl+3}], v[68:71], 0")
            a(f"v_mfma_f32_16x16x32_bf16 v[{c}:{c+3}], v[{cur+8*tl+4}:{cur+8*tl+7}], v[72:75], v[{c}:{c+3}]")
        if bt:
            e2_store(bt - 1)
    a("s_nop 7")
    a("s_nop 3")
    stamp(a, 5)
    rstamp(a, 0)
    e2_store(4)
    stamp(a, 6)
    rstamp(a, 1, wait=True)
    a("s_mov_b32 s21, 0")
    if CP < 64:
        a(f"s_mov_b64 exec, {(1 << CP) - 1}")
    a.label(".k2_poll")
    if CS:
        a(f"s_sleep {CS}")
    a("buffer_load_dwordx4 v[68:71], v5, s[8:11], 0 offen sc1")
    a("s_waitcnt vmcnt(0)")
    for r in range(4):
        a(f"v_xor_b32 v{40+r}, s20, v{68+r}")
    a("v_or3_b32 v40, v40, v41, v42")
    a("v_or_b32 v40, v40, v43")
    a("v_and_b32 v40, 0xffff, v40")
    a("v_cmp_ne_u32 vcc, 0, v40")
    a("s_cbranch_vccz .k2_poll2")
    a("s_add_u32 s21, s21, 1")
    a(f"s_cmp_lt_u32 s21, {SPIN_MAX}")
    a("s_cbranch_scc1 .k2_poll")
    a("s_endpgm")
    a.label(".k2_poll2")
    a("s_mov_b64 exec, -1")
    n0 = 1 if CP == 64 else 0
    for n in range(n0, 5):
        a(f"buffer_load_dwordx4 v[{68+4*n}:{71+4*n}], v5, s[8:11], {'0' if n == 0 else 's%d' % (50+n)} offen sc1")
    a("s_waitcnt vmcnt(0)")
    for r in range(20):
        a(f"v_xor_b32 v{40+r}, s20, v{68+r}")
    for r in range(1, 19, 2):
        a(f"v_or3_b32 v40, v40, v{40+r}, v{41+r}")
    a("v_or_b32 v40, v40, v59")
    a("v_and_b32 v40, 0xffff, v40")
    a("v_cmp_ne_u32 vcc, 0, v40")
    a("s_cbranch_vccz .k2_got")
    a("s_add_u32 s21, s21, 1")
    a(f"s_cmp_lt_u32 s21, {SPIN_MAX}")
    a("s_cbranch_scc1 .k2_poll2")
    a("s_endpgm")
    a.label(".k2_got")
    stamp(a, 7)
    rstamp(a, 2)
    if INSTR:
        a("s_cmp_eq_u32 s19, 20")
        a("s_cselect_b32 s59, s21, s59")
    for n in range(5):
        b = 68 + 4 * n
        a(f"v_perm_b32 v{40+2*n}, v{b+1}, v{b}, s26")
        a(f"v_perm_b32 v{41+2*n}, v{b+3}, v{b+2}, s26")
        a(f"ds_write_b64 v{6+n}, v[{40+2*n}:{41+2*n}]")
    a("s_add_u32 s19, s19, 1")
    a("s_branch .k2_step")
    a.label(".k2_fin")
    a("s_waitcnt vmcnt(0)")
    dump_rt(a, G)
    dump_stamps(a, G, 0, 0, 8, "s59")
    a("s_endpgm")

    a.label(".k2_reducer")
    a(f"""
    s_sub_u32 s16, s2, {NCH}
    s_lshl_b32 s28, s16, 14
    s_add_u32 s28, s28, {G.WS_EX2}
    s_lshl_b32 s29, s18, 6
    s_add_u32 s28, s28, s29
    v_lshrrev_b32 v4, 2, v1
    v_lshlrev_b32 v4, 8, v4
    v_and_b32 v8, 3, v1
    v_lshlrev_b32 v5, 4, v8
    v_add_u32 v4, v4, v5
    v_add_u32 v4, s28, v4
    v_lshrrev_b32 v7, 1, v8
    v_mul_u32_u24 v7, 2560, v7
    v_and_b32 v8, 1, v1
    v_lshlrev_b32 v8, 4, v8
    v_add_u32 v7, v7, v8
    s_lshl_b32 s29, s16, 5
    s_mul_i32 s28, s18, 5120
    s_add_u32 s29, s29, s28
    s_add_u32 s29, s29, {G.WS_EX3}
    v_add_u32 v7, s29, v7
    s_mov_b32 s24, 15
    s_mov_b32 s25, 0
    s_mov_b32 s20, 1
    s_mov_b32 s51, 4096
    s_mov_b32 s52, 8192
    s_mov_b32 s53, 12288
    """)
    a.label(".k2_rstep")
    stamp(a, 0, "s20", 21)
    a("s_mov_b32 s21, 0")
    if RP < 64:
        a(f"s_mov_b64 exec, {(1 << RP) - 1}")
    a.label(".k2_rpoll")
    if RS:
        a(f"s_sleep {RS}")
    a("buffer_load_dwordx4 v[16:19], v4, s[8:11], 0 offen sc1")
    a("s_waitcnt vmcnt(0)")
    for r in range(4):
        a(f"v_xor_b32 v{40+r}, s20, v{16+r}")
    a("v_or3_b32 v40, v40, v41, v42")
    a("v_or_b32 v40, v40, v43")
    a("v_and_b32 v40, 63, v40")
    a("v_cmp_ne_u32 vcc, 0, v40")
    a("s_cbranch_vccz .k2_rpoll2")
    a("s_add_u32 s21, s21, 1")
    a(f"s_cmp_lt_u32 s21, {SPIN_MAX}")
    a("s_cbranch_scc1 .k2_rpoll")
    a("s_endpgm")
    a.label(".k2_rpoll2")
    rstamp(a, 3, "s20", 21)
    a("s_mov_b64 exec, -1")
    n0 = 1 if RP == 64 else 0
    for n in range(n0, 4):
        a(f"buffer_load_dwordx4 v[{16+4*n}:{19+4*n}], v4, s[8:11], {'0' if n == 0 else 's%d' % (50+n)} offen sc1")
    a("s_waitcnt vmcnt(0)")
    for r in range(16):
        a(f"v_xor_b32 v{40+r}, s20, v{16+r}")
    for r in range(1, 15, 2):
        a(f"v_or3_b32 v40, v40, v{40+r}, v{41+r}")
    a("v_or_b32 v40, v40, v55")
    a("v_and_b32 v40, 63, v40")
    a("v_cmp_ne_u32 vcc, 0, v40")
    a("s_cbranch_vccz .k2_rgot")
    a("s_add_u32 s21, s21, 1")
    a(f"s_cmp_lt_u32 s21, {SPIN_MAX}")
    a("s_cbranch_scc1 .k2_rpoll2")
    a("s_endpgm")
    a.label(".k2_rgot")
    stamp(a, 1, "s20", 21)
    rstamp(a, 0, "s20", 21)
    if INSTR:
        a("s_cmp_eq_u32 s20, 21")
        a("s_cselect_b32 s59, s21, s59")
    for r in range(4):
        a(f"v_add_f32 v{16+r}, v{16+r}, v{20+r}")
        a(f"v_add_f32 v{24+r}, v{24+r}, v{28+r}")
    for r in range(4):
        a(f"v_add_f32 v{16+r}, v{16+r}, v{24+r}")
    a("s_nop 1")
    for ror in (4, 8):
        for r in range(4):
            a(f"v_add_f32_dpp v{16+r}, v{16+r}, v{16+r} row_ror:{ror} row_mask:0xf bank_mask:0xf")
        a("s_nop 1")
    for sw in ("v_permlane16_swap_b32", "v_permlane32_swap_b32"):
        for r in range(4):
            a(f"v_mov_b32 v{20+r}, v{16+r}")
        a("s_nop 1")
        for r in range(4):
            a(f"{sw} v{16+r}, v{20+r}")
        a("s_nop 1")
        for r in range(4):
            a(f"v_add_f32 v{16+r}, v{16+r}, v{20+r}")
        a("s_nop 1")
    a("""
    v_cvt_pk_bf16_f32 v20, v16, v17
    v_cvt_pk_bf16_f32 v21, v18, v19
    v_lshlrev_b32 v16, 16, v20
    v_and_b32 v17, 0xffff0000, v20
    v_lshlrev_b32 v18, 16, v21
    v_and_b32 v19, 0xffff0000, v21
    v_or_b32 v16, s20, v16
    v_or_b32 v17, s20, v17
    v_or_b32 v18, s20, v18
    v_or_b32 v19, s20, v19
    s_mov_b64 exec, s[24:25]
    buffer_store_dwordx4 v[16:19], v7, s[8:11], 0 offen sc1
    s_mov_b64 exec, -1
    """)
    a.label(".k2_rnext")
    stamp(a, 2, "s20", 21)
    rstamp(a, 1, "s20", 21)
    rstamp(a, 2, "s20", 21, wait=True)
    a("""
    s_add_u32 s20, s20, 1
    s_cmp_le_u32 s20, 63
    s_cbranch_scc1 .k2_rstep
    s_waitcnt vmcnt(0)
    """)
    dump_rt(a, G)
    dump_stamps(a, G, NCH, 64, 3, "s59")
    a("s_endpgm")
    a.label(".k2_work")
    import gen_gemm2
    nw, lds, nv = gen_gemm2.gemm_section(a, G, "k2w", [
        dict(A=('ws', G.WS_WT), lda=1280, B=('A_x', 0), ldb=1280, K=640, O=('ws', G.WS_QK), ldo=16384,
             split='m', xm=2, xn=16, NB=5),
        dict(A=('ws', G.WS_BWT), lda=1280, B=('B_x', 0), ldb=1280, K=640, O=('ws', G.WS_BQ), ldo=3840,
             split='m', xm=1, xn=16, NB=5, mlimit=1920),
    ], 256, 128, 2, 2, wg0=NCH + NRED)
    assert lds <= LDS_BYTES
    G.KERNELS.append((label, 256, 256))
    G.LAUNCHES.append((label, NCH + NRED + nw, 256, LDS_BYTES))


def gen_all(a, G):
    gen_chain(a, G)


def gen_k3(a, G):
    label = "k3_attn_kernel"
    NA, NB = 512, 256
    G.kernel_begin(a, label)
    a(f"""
    s_cmp_ge_u32 s2, {NA + NB}
    s_cbranch_scc1 .k3_end
    s_load_dwordx2 s[4:5], s[0:1], {G.ARG['ws']}
    v_lshrrev_b32 v1, 6, v0
    s_nop 1
    v_readfirstlane_b32 s18, v1
    v_and_b32 v1, 63, v0
    s_waitcnt lgkmcnt(0)
    """)
    G.srd(a, 8, 4, G.WS_BYTES)
    a(f"""
    s_mov_b32 s40, 0x3fb8aa3b
    s_cmp_ge_u32 s2, {NA}
    s_cbranch_scc1 .k3_b
    s_lshl_b32 s16, s2, 2
    s_add_u32 s16, s16, s18
    s_and_b32 s17, s16, 31
    s_lshr_b32 s16, s16, 5
    s_mov_b32 s41, 0x3db504f3
    v_and_b32 v2, 31, v1
    v_lshrrev_b32 v3, 5, v1
    """)
    a(f"""
    s_lshl_b32 s28, s16, 19
    s_lshl_b32 s29, s17, 8
    s_add_u32 s28, s28, s29
    s_add_u32 s28, s28, {G.WS_QK}
    v_lshlrev_b32 v4, 14, v2
    v_lshlrev_b32 v5, 5, v3
    v_add_u32 v4, v4, v5
    v_add_u32 v4, s28, v4
    v_add_u32 v6, 0x2000, v4
    s_lshl_b32 s28, s16, 16
    s_lshl_b32 s29, s17, 11
    s_add_u32 s28, s28, s29
    s_add_u32 s28, s28, {G.WS_KM}
    v_and_b32 v7, 7, v2
    v_lshlrev_b32 v7, 8, v7
    v_add_u32 v7, v7, v5
    v_add_u32 v7, s28, v7
    """)
    for kb in range(4):
        for hf in range(2):
            o = kb * 64 + hf * 16
            i = kb * 2 + hf
            a(f"buffer_load_dwordx4 v[{16+4*i}:{19+4*i}], v4, s[8:11], 0 offen offset:{o}")
            a(f"buffer_load_dwordx4 v[{48+4*i}:{51+4*i}], v6, s[8:11], 0 offen offset:{o}")
            a(f"buffer_load_dwordx4 v[{80+4*i}:{83+4*i}], v7, s[8:11], 0 offen offset:{o}")
    a(f"""
    s_lshl_b32 s28, s17, 19
    s_lshl_b32 s29, s16, 6
    s_add_u32 s28, s28, s29
    s_add_u32 s28, s28, {G.WS_VT}
    v_lshlrev_b32 v8, 12, v2
    v_lshlrev_b32 v5, 3, v3
    v_add_u32 v8, v8, v5
    v_add_u32 v8, s28, v8
    s_lshl_b32 s28, s16, 16
    s_lshl_b32 s29, s17, 11
    s_add_u32 s28, s28, s29
    s_add_u32 s28, s28, {G.WS_VMT}
    v_lshlrev_b32 v9, 4, v2
    v_add_u32 v9, v9, v5
    v_add_u32 v9, s28, v9
    s_mov_b32 s28, 0
    """)
    for et in range(4):
        b = 144 + 12 * et
        a(f"buffer_load_dwordx2 v[{b}:{b+1}], v8, s[8:11], s28 offen")
        a(f"buffer_load_dwordx2 v[{b+2}:{b+3}], v8, s[8:11], s28 offen offset:16")
        a(f"buffer_load_dwordx2 v[{b+4}:{b+5}], v8, s[8:11], s28 offen offset:32")
        a(f"buffer_load_dwordx2 v[{b+6}:{b+7}], v8, s[8:11], s28 offen offset:48")
        a(f"buffer_load_dwordx2 v[{b+8}:{b+9}], v9, s[8:11], 0 offen offset:{et*512}")
        a(f"v_mov_b32 v{b+10}, 0")
        a(f"v_mov_b32 v{b+11}, 0")
        a("s_add_u32 s28, s28, 0x20000")
    a("s_waitcnt vmcnt(20)")
    for i in range(8):
        cin = "0" if i == 0 else "v[112:127]"
        a(f"v_mfma_f32_32x32x16_bf16 v[112:127], v[{48+4*i}:{51+4*i}], v[{16+4*i}:{19+4*i}], {cin}")
    for i in range(8):
        cin = "0" if i == 0 else "v[128:143]"
        a(f"v_mfma_f32_32x32x16_bf16 v[128:143], v[{80+4*i}:{83+4*i}], v[{16+4*i}:{19+4*i}], {cin}")
    a("s_nop 15")
    a("s_nop 7")
    S = list(range(112, 132))
    for p in range(10):
        round_bf16_pair(a, f"v{S[2*p]}", f"v{S[2*p+1]}", "v16")
    for r in S:
        a(f"v_mul_f32 v{r}, s41, v{r}")
    for p in range(10):
        round_bf16_pair(a, f"v{S[2*p]}", f"v{S[2*p+1]}", "v16")
    a("v_mov_b32 v17, 0xf149f2ca")
    a("v_lshlrev_b32 v18, 2, v3")
    a("v_sub_u32 v18, v2, v18")
    for r in range(16):
        k0 = (r & 3) + 8 * (r >> 2)
        a(f"v_cmp_le_i32 vcc, {k0}, v18")
        a("s_nop 1")
        a(f"v_cndmask_b32 v{112+r}, v17, v{112+r}, vcc")
    a("v_max3_f32 v19, v112, v113, v114")
    for r in range(115, 131, 2):
        a(f"v_max3_f32 v19, v19, v{r}, v{r+1}")
    a("v_max_f32 v19, v19, v131")

    def x32(op, x):
        a(f"v_mov_b32 v20, {x}")
        a(f"v_mov_b32 v21, {x}")
        a("s_nop 1")
        a("v_permlane32_swap_b32 v20, v21")
        a("s_nop 1")
        a(f"{op} {x}, v20, v21")
    x32("v_max_f32", "v19")
    for r in S:
        a(f"v_sub_f32 v{r}, v{r}, v19")
    for r in S:
        a(f"v_mul_f32 v{r}, s40, v{r}")
    for r in S:
        a(f"v_exp_f32 v{r}, v{r}")
    a("s_nop 1")
    a("v_add_f32 v19, v112, v113")
    for r in S[2:]:
        a(f"v_add_f32 v19, v19, v{r}")
    x32("v_add_f32", "v19")
    a("v_rcp_f32 v19, v19")
    a("s_nop 1")
    for r in S:
        a(f"v_mul_f32 v{r}, v{r}, v19")
    for p in range(10):
        a(f"v_cvt_pk_bf16_f32 v{24+p}, v{S[2*p]}, v{S[2*p+1]}")
    a("v_mov_b32 v34, 0")
    a("v_mov_b32 v35, 0")
    a("s_waitcnt vmcnt(0)")
    a("s_nop 1")
    for et in range(4):
        b = 144 + 12 * et
        c = 48 + 16 * et
        a(f"v_mfma_f32_32x32x16_bf16 v[{c}:{c+15}], v[{b}:{b+3}], v[24:27], 0")
        a(f"v_mfma_f32_32x32x16_bf16 v[{c}:{c+15}], v[{b+4}:{b+7}], v[28:31], v[{c}:{c+15}]")
        a(f"v_mfma_f32_32x32x16_bf16 v[{c}:{c+15}], v[{b+8}:{b+11}], v[32:35], v[{c}:{c+15}]")
    a(f"""
    s_lshl_b32 s28, s16, 18
    s_lshl_b32 s29, s17, 8
    s_add_u32 s28, s28, s29
    s_add_u32 s28, s28, {G.WS_OA}
    v_lshlrev_b32 v4, 13, v2
    v_lshlrev_b32 v5, 4, v3
    v_add_u32 v4, v4, v5
    v_add_u32 v4, s28, v4
    s_nop 15
    s_nop 7
    """)
    for et in range(4):
        c = 48 + 16 * et
        p = 16 + 8 * (et & 1)
        for q in range(8):
            a(f"v_cvt_pk_bf16_f32 v{p+q}, v{c+2*q}, v{c+2*q+1}")
        a("s_nop 1")
        for pr in range(2):
            for w in range(2):
                a(f"v_permlane32_swap_b32 v{p+4*pr+w}, v{p+4*pr+2+w}")
        a("s_nop 1")
        a(f"buffer_store_dwordx4 v[{p}:{p+3}], v4, s[8:11], 0 offen offset:{et*64}")
        a(f"buffer_store_dwordx4 v[{p+4}:{p+7}], v4, s[8:11], 0 offen offset:{et*64+32}")
    a("s_waitcnt vmcnt(0)")
    a("s_endpgm")

    a.label(".k3_b")
    a(f"""
    s_sub_u32 s16, s2, {NA}
    s_lshl_b32 s16, s16, 3
    v_lshrrev_b32 v2, 5, v0
    v_add_u32 v2, s16, v2
    v_and_b32 v3, 31, v0
    v_mul_u32_u24 v3, 40, v3
    s_mov_b32 s41, 0x3e64f92e
    s_movk_i32 s28, 3840
    """)
    a("v_mul_lo_u32 v4, v2, s28")
    a("v_add_u32 v4, v4, v3")
    a(f"v_add_u32 v4, {G.WS_BQ}, v4")
    a("buffer_load_dwordx4 v[16:19], v4, s[8:11], 0 offen")
    a("buffer_load_dwordx4 v[20:23], v4, s[8:11], 0 offen offset:16")
    a("buffer_load_dwordx2 v[24:25], v4, s[8:11], 0 offen offset:32")
    for w in range(8):
        a(f"v_subrev_u32 v5, {2*w}, v2")
        a("v_max_i32 v5, 0, v5")
        a("v_mul_lo_u32 v5, v5, s28")
        a("v_add_u32 v5, v5, v3")
        a(f"v_add_u32 v5, {G.WS_BQ}, v5")
        kb, vb = 28 + 12 * w, 128 + 12 * w
        a(f"buffer_load_dwordx4 v[{kb}:{kb+3}], v5, s[8:11], 0 offen offset:1280")
        a(f"buffer_load_dwordx4 v[{kb+4}:{kb+7}], v5, s[8:11], 0 offen offset:1296")
        a(f"buffer_load_dwordx2 v[{kb+8}:{kb+9}], v5, s[8:11], 0 offen offset:1312")
        a(f"buffer_load_dwordx4 v[{vb}:{vb+3}], v5, s[8:11], 0 offen offset:2560")
        a(f"buffer_load_dwordx4 v[{vb+4}:{vb+7}], v5, s[8:11], 0 offen offset:2576")
        a(f"buffer_load_dwordx2 v[{vb+8}:{vb+9}], v5, s[8:11], 0 offen offset:2592")
    a("s_waitcnt vmcnt(0)")
    for w in range(8):
        kb = 28 + 12 * w
        a(f"v_mov_b32 v{224+w}, 0")
        for d in range(10):
            a(f"v_dot2_f32_bf16 v{224+w}, v{16+d}, v{kb+d}, v{224+w}")
    for p in range(4):
        round_bf16_pair(a, f"v{224+2*p}", f"v{225+2*p}", "v6")
    for w in range(8):
        a(f"v_mul_f32 v{224+w}, s41, v{224+w}")
    for p in range(4):
        round_bf16_pair(a, f"v{224+2*p}", f"v{225+2*p}", "v6")
    a("v_mov_b32 v7, 0xf149f2ca")
    for w in range(1, 8):
        a(f"v_cmp_le_u32 vcc, {2*w}, v2")
        a("s_nop 1")
        a(f"v_cndmask_b32 v{224+w}, v7, v{224+w}, vcc")
    a("v_max3_f32 v8, v224, v225, v226")
    a("v_max3_f32 v8, v8, v227, v228")
    a("v_max3_f32 v8, v8, v229, v230")
    a("v_max_f32 v8, v8, v231")
    for w in range(8):
        a(f"v_sub_f32 v{224+w}, v{224+w}, v8")
    for w in range(8):
        a(f"v_mul_f32 v{224+w}, s40, v{224+w}")
    for w in range(8):
        a(f"v_exp_f32 v{224+w}, v{224+w}")
    a("s_nop 1")
    a("v_add_f32 v8, v224, v225")
    for w in range(2, 8):
        a(f"v_add_f32 v8, v8, v{224+w}")
    a("v_rcp_f32 v8, v8")
    a("s_nop 1")
    for w in range(8):
        a(f"v_mul_f32 v{224+w}, v{224+w}, v8")
    for p in range(4):
        round_bf16_pair(a, f"v{224+2*p}", f"v{225+2*p}", "v6")
    for w in range(8):
        vb = 128 + 12 * w
        for d in range(10):
            a(f"v_lshlrev_b32 v6, 16, v{vb+d}")
            a(f"v_and_b32 v7, 0xffff0000, v{vb+d}")
            if w == 0:
                a(f"v_mul_f32 v{232+2*d}, v224, v6")
                a(f"v_mul_f32 v{233+2*d}, v224, v7")
            else:
                a(f"v_fma_f32 v{232+2*d}, v{224+w}, v6, v{232+2*d}")
                a(f"v_fma_f32 v{233+2*d}, v{224+w}, v7, v{233+2*d}")
    for d in range(10):
        a(f"v_cvt_pk_bf16_f32 v{16+d}, v{232+2*d}, v{233+2*d}")
    a(f"""
    v_mul_u32_u24 v4, 1280, v2
    v_add_u32 v4, v4, v3
    v_add_u32 v4, {G.WS_OB}, v4
    buffer_store_dwordx4 v[16:19], v4, s[8:11], 0 offen
    buffer_store_dwordx4 v[20:23], v4, s[8:11], 0 offen offset:16
    buffer_store_dwordx2 v[24:25], v4, s[8:11], 0 offen offset:32
    s_waitcnt vmcnt(0)
    """)
    a.label(".k3_end")
    a("s_endpgm")
    G.KERNELS.append((label, 256, 0))
    G.LAUNCHES.append((label, NA + NB, 256, 0))


def gen_all(a, G):
    gen_chain(a, G)
    gen_k3(a, G)
```

```python
def gemm_section(a, G, L, jobs, BM, BN, WM, WN, wg0=0):
    NW = WM * WN
    TM, TN = BM // WM // 32, BN // WN // 32
    PA, PB = BM // 16 // NW, BN // 16 // NW
    P = PA + PB
    SS = (BM + BN) * 64
    GS = 65536 // SS
    nj = sum(j['xm'] * j['xn'] for j in jobs)
    nwg = 8 * nj
    lds = max(j['NB'] for j in jobs) * SS
    maxgrp = max((j['NB'] + GS - 1) // GS for j in jobs)
    VDA = 4
    VDB = VDA + PA
    VR = VDB + PB
    F0 = (VR + 4 * maxgrp + 3) // 4 * 4
    FSZ = (TM + TN) * 4
    F1 = F0 + FSZ
    ACC = F1 + FSZ
    NV = ACC + TM * TN * 16
    a(f"""
    s_cmp_ge_u32 s2, {wg0 + nwg}
    s_cbranch_scc1 .{L}_end
    v_lshrrev_b32 v1, 6, v0
    s_sub_u32 s5, s2, {wg0}
    s_and_b32 s4, s5, 7
    v_readfirstlane_b32 s3, v1
    s_lshr_b32 s5, s5, 3
    v_and_b32 v1, 63, v0
    s_lshl_b32 s50, s3, 10
    """)
    base = 0
    for ji, j in enumerate(jobs):
        n = j['xm'] * j['xn']
        if ji < len(jobs) - 1:
            a(f"s_cmp_ge_u32 s5, {base + n}")
            a(f"s_cbranch_scc1 .{L}_j{ji+1}")
        body(a, G, L, ji, j, base, dict(BM=BM, BN=BN, WM=WM, WN=WN, NW=NW, TM=TM, TN=TN, PA=PA, PB=PB, P=P,
                                        SS=SS, GS=GS, VDA=VDA, VDB=VDB, VR=VR, F0=F0, F1=F1, ACC=ACC))
        if ji < len(jobs) - 1:
            a.label(f".{L}_j{ji+1}")
        base += n
    a.label(f".{L}_end")
    a("s_endpgm")
    return nwg, lds, NV


def gen_gemm2(a, G, label, jobs, BM, BN, WM, WN):
    G.kernel_begin(a, label)
    nwg, lds, NV = gemm_section(a, G, label.replace("_kernel", ""), jobs, BM, BN, WM, WN)
    G.KERNELS.append((label, NV, 0))
    G.LAUNCHES.append((label, nwg, WM * WN * 64, lds))


def body(a, G, L, ji, j, base, c):
    BM, BN, WM, WN, NW, TM, TN = c['BM'], c['BN'], c['WM'], c['WN'], c['NW'], c['TM'], c['TN']
    PA, PB, P, SS, GS = c['PA'], c['PB'], c['P'], c['SS'], c['GS']
    VDA, VDB, VR, F0, F1, ACC = c['VDA'], c['VDB'], c['VR'], c['F0'], c['F1'], c['ACC']
    NB = j['NB']
    NS = j['K'] // 32
    assert NS % NB == 0 and NS >= NB
    ngrp = (NB + GS - 1) // GS
    lda, ldb, ldo = j['lda'], j['ldb'], j['ldo']
    J = f"{L}_b{ji}"
    a(f"s_sub_u32 s7, s5, {base}")
    a(f"s_load_dwordx2 s[8:9], s[0:1], {G.ARG[j['A'][0]]}")
    a(f"s_load_dwordx2 s[10:11], s[0:1], {G.ARG[j['B'][0]]}")
    a(f"s_load_dwordx2 s[12:13], s[0:1], {G.ARG[j['O'][0]]}")
    n = j['xm'] * j['xn']
    if j['split'] == 'm':
        G.s_div(a, "s21", "s7", j['xm'], n)
        a(f"s_mul_i32 s20, s21, {j['xm']}")
        a("s_sub_u32 s20, s7, s20")
        a(f"s_mul_i32 s6, s4, {j['xm']}")
        a("s_add_u32 s20, s20, s6")
    else:
        G.s_div(a, "s20", "s7", j['xn'], n)
        a(f"s_mul_i32 s21, s20, {j['xn']}")
        a("s_sub_u32 s21, s7, s21")
        a(f"s_mul_i32 s6, s4, {j['xn']}")
        a("s_add_u32 s21, s21, s6")
    a(f"""
    v_lshrrev_b32 v2, 2, v1
    v_lshrrev_b32 v3, 4, v1
    v_xor_b32 v3, v3, v1
    v_and_b32 v3, 3, v3
    v_lshlrev_b32 v3, 4, v3
    s_lshl_b32 s6, s3, 4
    s_mul_i32 s22, s20, {BM}
    s_add_u32 s22, s22, s6
    s_mul_i32 s23, s21, {BN}
    s_add_u32 s23, s23, s6
    s_mov_b32 s24, {lda}
    s_mov_b32 s25, {ldb}
    """)
    for i in range(PA):
        a(f"v_add_u32 v{VDA+i}, s22, v2")
        if i:
            a(f"v_add_u32 v{VDA+i}, {16*NW*i}, v{VDA+i}")
        a(f"v_mul_lo_u32 v{VDA+i}, v{VDA+i}, s24")
        a(f"v_add_u32 v{VDA+i}, v{VDA+i}, v3")
        if j['A'][1]:
            a(f"v_add_u32 v{VDA+i}, {j['A'][1]}, v{VDA+i}")
    for i in range(PB):
        a(f"v_add_u32 v{VDB+i}, s23, v2")
        if i:
            a(f"v_add_u32 v{VDB+i}, {16*NW*i}, v{VDB+i}")
        a(f"v_mul_lo_u32 v{VDB+i}, v{VDB+i}, s25")
        a(f"v_add_u32 v{VDB+i}, v{VDB+i}, v3")
        if j['B'][1]:
            a(f"v_add_u32 v{VDB+i}, {j['B'][1]}, v{VDB+i}")
    a("s_waitcnt lgkmcnt(0)")
    G.srd(a, 32, 8, G.ARG_BYTES[j['A'][0]])
    G.srd(a, 36, 10, G.ARG_BYTES[j['B'][0]])
    G.srd(a, 40, 12, G.ARG_BYTES[j['O'][0]])

    def dma_ops(slot):
        ops = []
        for i in range(PA):
            ops.append(f"s_add_u32 m0, s50, {slot*SS + NW*i*1024}\ns_nop 0\n"
                       f"buffer_load_dwordx4 v{VDA+i}, s[32:35], s48 offen lds")
        for i in range(PB):
            ops.append(f"s_add_u32 m0, s50, {slot*SS + BM*64 + NW*i*1024}\ns_nop 0\n"
                       f"buffer_load_dwordx4 v{VDB+i}, s[36:39], s48 offen lds")
        return ops

    a("s_mov_b32 s48, 0")
    for s in range(NB):
        for op in dma_ops(s):
            a(op)
        a("s_add_u32 s48, s48, 64")
    a(f"""
    s_and_b32 s44, s3, {WM-1}
    s_lshr_b32 s45, s3, {WM.bit_length()-1}
    s_mul_i32 s44, s44, {BM//WM}
    s_mul_i32 s45, s45, {BN//WN}
    v_and_b32 v2, 31, v1
    v_lshrrev_b32 v3, 5, v1
    v_lshrrev_b32 v{F0}, 2, v1
    v_xor_b32 v{F0}, v{F0}, v3
    v_and_b32 v{F0}, 3, v{F0}
    v_lshlrev_b32 v{F0}, 4, v{F0}
    v_add_u32 v{VR}, s44, v2
    v_lshlrev_b32 v{VR}, 6, v{VR}
    v_add_u32 v{VR}, v{VR}, v{F0}
    v_xor_b32 v{VR+1}, 32, v{VR}
    v_add_u32 v{VR+2}, s45, v2
    v_lshlrev_b32 v{VR+2}, 6, v{VR+2}
    v_add_u32 v{VR+2}, v{VR+2}, v{F0}
    v_add_u32 v{VR+2}, {BM*64}, v{VR+2}
    v_xor_b32 v{VR+3}, 32, v{VR+2}
    """)
    for g in range(1, ngrp):
        for r in range(4):
            a(f"v_add_u32 v{VR+4*g+r}, {g*GS*SS}, v{VR+r}")
    for r in range(TM * TN * 16):
        a(f"v_mov_b32 v{ACC+r}, 0")

    def read_ops(slot, ks, F):
        g, sl = slot // GS, slot % GS
        ops = []
        for t in range(TM):
            ops.append(f"ds_read_b128 v[{F+4*t}:{F+4*t+3}], v{VR+4*g+ks} offset:{sl*SS + t*2048}")
        for t in range(TN):
            ops.append(f"ds_read_b128 v[{F+4*TM+4*t}:{F+4*TM+4*t+3}], v{VR+4*g+2+ks} offset:{sl*SS + t*2048}")
        return ops

    def mfma_ops(F):
        ops = []
        for tn in range(TN):
            for tm in range(TM):
                cc = ACC + (tm * TN + tn) * 16
                ops.append(f"v_mfma_f32_32x32x16_bf16 v[{cc}:{cc+15}], v[{F+4*tm}:{F+4*tm+3}], "
                           f"v[{F+4*TM+4*tn}:{F+4*TM+4*tn+3}], v[{cc}:{cc+15}]")
        return ops

    def interleave(ms, side):
        per = (len(side) + len(ms) - 1) // len(ms) if side else 0
        q = list(side)
        for m in ms:
            a(m)
            for _ in range(per):
                if q:
                    a(q.pop(0))
        for op in q:
            a(op)

    def stage(slot, dma, vm, last):
        a("s_waitcnt lgkmcnt(0)")
        interleave(mfma_ops(F0), read_ops(slot, 1, F1))
        if last:
            a("s_waitcnt lgkmcnt(0)")
            interleave(mfma_ops(F1), [])
            return
        a(f"s_waitcnt vmcnt({vm}) lgkmcnt(0)")
        a("s_barrier")
        side = read_ops((slot + 1) % NB, 0, F0)
        if dma:
            side += dma_ops(slot)
        interleave(mfma_ops(F1), side)
        if dma:
            a("s_add_u32 s48, s48, 64")

    a(f"s_waitcnt vmcnt({(NB-1)*P})")
    a("s_barrier")
    for op in read_ops(0, 0, F0):
        a(op)
    nit = (NS - NB) // NB
    if nit:
        a(f"s_mov_b32 s49, {nit}")
        a.label(f".{J}_loop")
        for s in range(NB):
            stage(s, True, (NB - 2) * P, False)
        a("s_sub_u32 s49, s49, 1")
        a("s_cmp_lg_u32 s49, 0")
        a(f"s_cbranch_scc1 .{J}_loop")
    for s in range(NB):
        stage(s, False, max(NB - 2 - s, 0) * P, s == NB - 1)
    a(f"""
    s_mul_i32 s46, s20, {BM}
    s_add_u32 s46, s46, s44
    s_mul_i32 s47, s21, {BN}
    s_add_u32 s47, s47, s45
    s_mov_b32 s24, {ldo}
    v_add_u32 v4, s47, v2
    v_mul_lo_u32 v4, v4, s24
    v_lshlrev_b32 v5, 4, v3
    v_add_u32 v4, v4, v5
    s_lshl_b32 s49, s46, 1
    s_add_u32 s49, s49, {j['O'][1]}
    v_add_u32 v4, s49, v4
    s_nop 15
    """)
    if 'mlimit' in j:
        a(f"s_cmp_ge_u32 s46, {j['mlimit']}")
        a(f"s_cbranch_scc1 .{L}_end")
    cnt = 0
    for tn in range(TN):
        for tm in range(TM):
            cc = ACC + (tm * TN + tn) * 16
            p = F0 + 8 * (cnt % 3)
            cnt += 1
            for q in range(8):
                a(f"v_cvt_pk_bf16_f32 v{p+q}, v{cc+2*q}, v{cc+2*q+1}")
            a("s_nop 1")
            for pr in range(2):
                for w in range(2):
                    a(f"v_permlane32_swap_b32 v{p+4*pr+w}, v{p+4*pr+2+w}")
            a("s_nop 1")
            a(f"buffer_store_dwordx4 v[{p}:{p+3}], v4, s[40:43], 0 offen offset:{tm*64}")
            a(f"buffer_store_dwordx4 v[{p+4}:{p+7}], v4, s[40:43], 0 offen offset:{tm*64+32}")
        if tn < TN - 1:
            a(f"v_add_u32 v4, {32*ldo}, v4")
    a("s_endpgm")
```

```python
import sys, re

NAME = "concat_heads__memory_aug_recurrent_mem_tr__sliding_local_dilated__prompt"

WS_WT   = 0x0000000
WS_WOT  = 0x1000000
WS_BWT  = 0x1600000
WS_BWOT = 0x1900000
WS_QK   = 0x2000000
WS_VT   = 0x4000000
WS_BQ   = 0x5000000
WS_OA   = 0x6000000
WS_OB   = 0x7000000
WS_KM   = 0x7400000
WS_VMT  = 0x7800000
WS_EX2  = 0x8000000
WS_EX3  = 0x8400000
WS_ZERO_BYTES = 0x450000
WS_BYTES = 0x10000000

ARG = dict(A_x=0, mem0=8, Wq=16, Wk=24, Wv=32, Wo=40, seg=48, B_x=56, wqkv=64, wo=72, out=80, dbg=88, ws=96)
ARG_BYTES = dict(A_x=2621440, mem0=10240, Wq=5242880, Wk=5242880, Wv=5242880, Wo=5242880,
                 B_x=2621440, wqkv=2457600, wo=819200, out=5242880, ws=WS_BYTES)


class Asm:
    def __init__(self):
        self.lines = []
        self.uid = 0

    def __call__(self, s):
        for ln in s.strip("\n").split("\n"):
            ln = ln.strip()
            if ln.startswith("buffer_") or ln.startswith("global_"):
                mo = re.search(r"offset:(\d+)", ln)
                assert not mo or int(mo.group(1)) < 4096, ln
            self.lines.append("    " + ln)

    def label(self, name):
        self.lines.append(name + ":")

    def new_label(self, base="L"):
        self.uid += 1
        return f".{base}_{self.uid}"

    def raw(self, s):
        self.lines.append(s)


def magic_div(d, maxv):
    for sh in (16, 20, 24):
        m = (1 << sh) // d + 1
        if all((t * m) >> sh == t // d for t in range(maxv)) and maxv * m < (1 << 31):
            return m, sh
    raise ValueError((d, maxv))


def s_div(a, dst, src, d, maxv):
    if d & (d - 1) == 0:
        a(f"s_lshr_b32 {dst}, {src}, {d.bit_length() - 1}")
    else:
        m, sh = magic_div(d, maxv)
        a(f"s_mul_i32 {dst}, {src}, {m}")
        a(f"s_lshr_b32 {dst}, {dst}, {sh}")


def srd(a, sd, sp, nbytes):
    a(f"s_mov_b32 s{sd}, s{sp}")
    a(f"s_mov_b32 s{sd+1}, s{sp+1}")
    a(f"s_mov_b32 s{sd+2}, {nbytes}")
    a(f"s_mov_b32 s{sd+3}, 0x00020000")


KERNELS = []
LAUNCHES = []


def kernel_begin(a, label):
    a.raw(f".globl {label}")
    a.raw(".p2align 8")
    a.raw(f".type {label},@function")
    a.label(label)


def gen_k0(a):
    label = "k0_transpose_kernel"
    jobs = [
        ("Wq", 10, 64, 8192, WS_WT, 1280, 'n'),
        ("Wk", 10, 64, 8192, WS_WT + 4096 * 1280, 1280, 'n'),
        ("Wv", 10, 64, 8192, WS_WT + 8192 * 1280, 1280, 'n'),
        ("Wo", 64, 10, 1280, WS_WOT, 8192, 'k'),
        ("wqkv", 10, 30, 3840, WS_BWT, 1280, 'n'),
        ("wo", 10, 10, 1280, WS_BWOT, 1280, 'n'),
    ]
    ntiles = sum(j[1] * j[2] for j in jobs)
    assert ntiles % 4 == 0
    nwg_t = ntiles // 4
    nwg_z = WS_ZERO_BYTES // 16384
    nwg = nwg_t + nwg_z
    kernel_begin(a, label)
    a(f"""
    s_cmp_ge_u32 s2, {nwg}
    s_cbranch_scc1 .k0_end
    s_load_dwordx2 s[4:5], s[0:1], {ARG['ws']}
    s_waitcnt lgkmcnt(0)
    """)
    srd(a, 12, 4, WS_BYTES)
    a(f"""
    s_cmp_lt_u32 s2, {nwg_t}
    s_cbranch_scc1 .k0_tr
    s_sub_u32 s3, s2, {nwg_t}
    s_lshl_b32 s3, s3, 14
    s_add_u32 s3, s3, {WS_EX2}
    v_lshlrev_b32 v1, 4, v0
    v_add_u32 v1, s3, v1
    v_mov_b32 v4, 0
    v_mov_b32 v5, 0
    v_mov_b32 v6, 0
    v_mov_b32 v7, 0
    buffer_store_dwordx4 v[4:7], v1, s[12:15], 0 offen
    v_add_u32 v1, 0x1000, v1
    buffer_store_dwordx4 v[4:7], v1, s[12:15], 0 offen
    v_add_u32 v1, 0x1000, v1
    buffer_store_dwordx4 v[4:7], v1, s[12:15], 0 offen
    v_add_u32 v1, 0x1000, v1
    buffer_store_dwordx4 v[4:7], v1, s[12:15], 0 offen
    s_waitcnt vmcnt(0)
    s_endpgm
    """)
    a.label(".k0_tr")
    a("""
    v_lshrrev_b32 v1, 6, v0
    s_nop 1
    v_readfirstlane_b32 s3, v1
    s_lshl_b32 s6, s2, 2
    s_add_u32 s6, s6, s3
    """)
    base = 0
    for i, (arg, KT, NT, sld, doff, dld, order) in enumerate(jobs):
        n = KT * NT
        nxt = f".k0_j{i+1}"
        a(f"s_cmp_ge_u32 s6, {base + n}")
        a(f"s_cbranch_scc1 {nxt}")
        a(f"s_sub_u32 s7, s6, {base}")
        a(f"s_load_dwordx2 s[8:9], s[0:1], {ARG[arg]}")
        if order == 'n':
            s_div(a, "s20", "s7", NT, n)
            a(f"s_mul_i32 s21, s20, {NT}")
            a("s_sub_u32 s21, s7, s21")
        else:
            s_div(a, "s21", "s7", KT, n)
            a(f"s_mul_i32 s20, s21, {KT}")
            a("s_sub_u32 s20, s7, s20")
        a(f"s_mov_b32 s22, {sld}")
        a(f"s_mov_b32 s23, {dld}")
        a(f"s_mov_b32 s24, {doff}")
        a(f"s_mov_b32 s25, {ARG_BYTES[arg]}")
        a("s_branch .k0_go")
        a.label(nxt)
        base += n
    a("s_endpgm")
    a.label(".k0_go")
    a("""
    s_waitcnt lgkmcnt(0)
    s_mov_b32 s16, s8
    s_mov_b32 s17, s9
    s_mov_b32 s18, s25
    s_mov_b32 s19, 0x00020000
    v_and_b32 v1, 63, v0
    v_and_b32 v2, 7, v1
    v_lshrrev_b32 v3, 3, v1
    """)
    a("""
    s_lshl_b32 s26, s20, 6
    v_lshlrev_b32 v4, 3, v3
    v_add_u32 v4, s26, v4
    v_mul_lo_u32 v5, v4, s22
    s_lshl_b32 s27, s21, 6
    v_lshlrev_b32 v6, 3, v2
    v_add_u32 v6, s27, v6
    v_lshlrev_b32 v7, 1, v6
    v_add_u32 v5, v5, v7
    v_mul_lo_u32 v8, v6, s23
    v_lshlrev_b32 v9, 1, v4
    v_add_u32 v8, v8, v9
    v_add_u32 v8, s24, v8
    """)
    for r in range(8):
        a(f"buffer_load_dwordx4 v[{16+4*r}:{19+4*r}], v5, s[16:19], 0 offen")
        if r < 7:
            a("v_add_u32 v5, s22, v5")
    a("s_mov_b32 s28, 0x05040100")
    a("s_mov_b32 s29, 0x07060302")
    a("s_waitcnt vmcnt(0)")
    for c in range(8):
        for q in range(4):
            sel = "s28" if c % 2 == 0 else "s29"
            a(f"v_perm_b32 v{48+4*c+q}, v{16+4*(2*q+1)+(c>>1)}, v{16+4*(2*q)+(c>>1)}, {sel}")
    for c in range(8):
        a(f"buffer_store_dwordx4 v[{48+4*c}:{51+4*c}], v8, s[12:15], 0 offen")
        if c < 7:
            a("v_add_u32 v8, s23, v8")
    a("s_waitcnt vmcnt(0)")
    a.label(".k0_end")
    a("s_endpgm")
    KERNELS.append((label, 80, 0))
    LAUNCHES.append((label, nwg, 256, 0))


def gen_gemm(a, label, jobs, TM, TN):
    nwg = sum(j['MT'] * j['NT'] for j in jobs)
    L = label.replace("_kernel", "")
    kernel_begin(a, label)
    a(f"""
    s_cmp_ge_u32 s2, {nwg}
    s_cbranch_scc1 .{L}_end
    """)
    base = 0
    for i, j in enumerate(jobs):
        n = j['MT'] * j['NT']
        nxt = f".{L}_j{i+1}"
        a(f"s_cmp_ge_u32 s2, {base + n}")
        a(f"s_cbranch_scc1 {nxt}")
        a(f"s_sub_u32 s7, s2, {base}")
        a(f"s_load_dwordx2 s[8:9], s[0:1], {ARG[j['A'][0]]}")
        a(f"s_load_dwordx2 s[10:11], s[0:1], {ARG[j['B'][0]]}")
        a(f"s_load_dwordx2 s[12:13], s[0:1], {ARG[j['O'][0]]}")
        s_div(a, "s21", "s7", j['MT'], n)
        a(f"s_mul_i32 s20, s21, {j['MT']}")
        a("s_sub_u32 s20, s7, s20")
        a(f"s_mov_b32 s22, {j['lda']}")
        a(f"s_mov_b32 s23, {j['ldb']}")
        a(f"s_mov_b32 s24, {j['ldo']}")
        a(f"s_mov_b32 s25, {j['A'][1]}")
        a(f"s_mov_b32 s26, {j['B'][1]}")
        a(f"s_mov_b32 s27, {j['O'][1]}")
        a(f"s_mov_b32 s28, {j['K'] * 2}")
        a(f"s_mov_b32 s29, {ARG_BYTES[j['A'][0]]}")
        a(f"s_mov_b32 s30, {ARG_BYTES[j['B'][0]]}")
        a(f"s_mov_b32 s31, {ARG_BYTES[j['O'][0]]}")
        a(f"s_branch .{L}_go")
        a.label(nxt)
        base += n
    a("s_endpgm")
    a.label(f".{L}_go")
    a("""
    s_waitcnt lgkmcnt(0)
    s_mov_b32 s32, s8
    s_mov_b32 s33, s9
    s_mov_b32 s34, s29
    s_mov_b32 s35, 0x00020000
    s_mov_b32 s36, s10
    s_mov_b32 s37, s11
    s_mov_b32 s38, s30
    s_mov_b32 s39, 0x00020000
    s_mov_b32 s40, s12
    s_mov_b32 s41, s13
    s_mov_b32 s42, s31
    s_mov_b32 s43, 0x00020000
    """)
    a(f"""
    v_lshrrev_b32 v1, 6, v0
    s_nop 1
    v_readfirstlane_b32 s3, v1
    s_and_b32 s44, s3, 1
    s_lshr_b32 s45, s3, 1
    s_mul_i32 s46, s20, {64*TM}
    s_mul_i32 s44, s44, {32*TM}
    s_add_u32 s46, s46, s44
    s_mul_i32 s47, s21, {64*TN}
    s_mul_i32 s45, s45, {32*TN}
    s_add_u32 s47, s47, s45
    v_and_b32 v1, 31, v0
    v_bfe_u32 v2, v0, 5, 1
    v_lshlrev_b32 v3, 5, v2
    """)
    VA, VB = 4, 4 + TM
    for t in range(TM):
        a(f"v_add_u32 v{VA+t}, s46, v1")
        if t:
            a(f"v_add_u32 v{VA+t}, {32*t}, v{VA+t}")
        a(f"v_mul_lo_u32 v{VA+t}, v{VA+t}, s22")
        a(f"v_add_u32 v{VA+t}, v{VA+t}, v3")
        a(f"v_add_u32 v{VA+t}, s25, v{VA+t}")
    for t in range(TN):
        a(f"v_add_u32 v{VB+t}, s47, v1")
        if t:
            a(f"v_add_u32 v{VB+t}, {32*t}, v{VB+t}")
        a(f"v_mul_lo_u32 v{VB+t}, v{VB+t}, s23")
        a(f"v_add_u32 v{VB+t}, v{VB+t}, v3")
        a(f"v_add_u32 v{VB+t}, s26, v{VB+t}")
    ACC = 16
    NACC = TM * TN * 16
    FR = ACC + NACC
    FSZ = (TM + TN) * 8
    for r in range(NACC):
        a(f"v_mov_b32 v{ACC+r}, 0")

    def loads(buf):
        b = FR + buf * FSZ
        for t in range(TM):
            a(f"buffer_load_dwordx4 v[{b+8*t}:{b+8*t+3}], v{VA+t}, s[32:35], s48 offen")
            a(f"buffer_load_dwordx4 v[{b+8*t+4}:{b+8*t+7}], v{VA+t}, s[32:35], s48 offen offset:16")
        b += 8 * TM
        for t in range(TN):
            a(f"buffer_load_dwordx4 v[{b+8*t}:{b+8*t+3}], v{VB+t}, s[36:39], s48 offen")
            a(f"buffer_load_dwordx4 v[{b+8*t+4}:{b+8*t+7}], v{VB+t}, s[36:39], s48 offen offset:16")

    def mfmas(buf):
        b = FR + buf * FSZ
        for h in range(2):
            for tm in range(TM):
                for tn in range(TN):
                    c = ACC + (tm * TN + tn) * 16
                    ra = b + 8 * tm + 4 * h
                    rb = b + 8 * TM + 8 * tn + 4 * h
                    a(f"v_mfma_f32_32x32x16_bf16 v[{c}:{c+15}], v[{ra}:{ra+3}], v[{rb}:{rb+3}], v[{c}:{c+15}]")

    NL = 2 * (TM + TN)
    a("s_mov_b32 s48, 0")
    loads(0)
    a.label(f".{L}_loop")
    a("s_add_u32 s48, s48, 64")
    loads(1)
    a(f"s_waitcnt vmcnt({NL})")
    mfmas(0)
    a("s_add_u32 s48, s48, 64")
    a("s_cmp_ge_u32 s48, s28")
    a(f"s_cbranch_scc1 .{L}_last")
    loads(0)
    a(f"s_waitcnt vmcnt({NL})")
    mfmas(1)
    a(f"s_branch .{L}_loop")
    a.label(f".{L}_last")
    a("s_waitcnt vmcnt(0)")
    mfmas(1)
    a("s_nop 15")
    a("s_nop 15")
    a(f"""
    v_add_u32 v4, s47, v1
    v_mul_lo_u32 v4, v4, s24
    v_lshlrev_b32 v5, 4, v2
    v_add_u32 v4, v4, v5
    s_lshl_b32 s49, s46, 1
    s_add_u32 s49, s49, s27
    v_add_u32 v4, s49, v4
    s_lshl_b32 s50, s24, 5
    """)
    for tn in range(TN):
        for tm in range(TM):
            c = ACC + (tm * TN + tn) * 16
            p = FR
            for q in range(8):
                a(f"v_cvt_pk_bf16_f32 v{p+q}, v{c+2*q}, v{c+2*q+1}")
            a("s_nop 1")
            for pr in range(2):
                for w in range(2):
                    a(f"v_permlane32_swap_b32 v{p+4*pr+w}, v{p+4*pr+2+w}")
            a("s_nop 1")
            a(f"buffer_store_dwordx4 v[{p}:{p+3}], v4, s[40:43], 0 offen offset:{tm*64}")
            a(f"buffer_store_dwordx4 v[{p+4}:{p+7}], v4, s[40:43], 0 offen offset:{tm*64+32}")
            a("s_nop 1")
        if tn < TN - 1:
            a("v_add_u32 v4, s50, v4")
    a("s_waitcnt vmcnt(0)")
    a.label(f".{L}_end")
    a("s_endpgm")
    KERNELS.append((label, FR + 2 * FSZ, 0))
    LAUNCHES.append((label, nwg, 256, 0))


def emit(path):
    a = Asm()
    gen_k0(a)
    import gen_gemm2
    me = sys.modules[__name__]
    gen_gemm2.gen_gemm2(a, me, "k1_gemm_kernel", [
        dict(A=('ws', WS_WT + 4096 * 1280), lda=1280, B=('A_x', 0), ldb=1280, K=640, O=('ws', WS_QK + 8192), ldo=16384,
             split='m', xm=2, xn=8, NB=4),
        dict(A=('A_x', 0), lda=1280, B=('ws', WS_WT + 8192 * 1280), ldb=1280, K=640, O=('ws', WS_VT), ldo=4096,
             split='n', xm=8, xn=2, NB=4),
    ], 256, 256, 2, 4)
    try:
        import gen_chain
        gen_chain.gen_all(a, sys.modules[__name__])
    except ImportError:
        pass
    gen_gemm2.gen_gemm2(a, me, "k4_gemm_kernel", [
        dict(A=('ws', WS_WOT), lda=8192, B=('ws', WS_OA), ldb=8192, K=4096, O=('out', 0), ldo=2560,
             split='n', xm=5, xn=4, NB=8),
        dict(A=('ws', WS_BWOT), lda=1280, B=('ws', WS_OB), ldb=1280, K=640, O=('out', 1280), ldo=2560,
             split='n', xm=5, xn=4, NB=5),
    ], 128, 64, 2, 2)

    hdr = open(f"cdna_kernels/{NAME}.s.ref").read().split("; Override launch geometry")[0]
    out = [hdr.rstrip("\n")]
    for (lab, g, b, lds) in LAUNCHES:
        out.append(f"; @launch kernel={lab} grid=({g},1,1) block=({b},1,1) lds={lds}")
    out.append('.amdgcn_target "amdgcn-amd-amdhsa--gfx950"')
    out.append(".text")
    out += a.lines
    out.append('.section .rodata,"a"')
    for (lab, vg, ag) in KERNELS:
        acc_off = (vg + 3) // 4 * 4
        tot = acc_off + ag
        out.append(".p2align 6")
        out.append(f".amdhsa_kernel {lab}")
        out.append(f"  .amdhsa_next_free_vgpr {tot}")
        out.append("  .amdhsa_next_free_sgpr 102")
        out.append(f"  .amdhsa_accum_offset {acc_off}")
        out.append("  .amdhsa_group_segment_fixed_size 0")
        out.append("  .amdhsa_kernarg_size 104")
        out.append("  .amdhsa_user_sgpr_count 2")
        out.append("  .amdhsa_user_sgpr_kernarg_segment_ptr 1")
        out.append("  .amdhsa_system_sgpr_workgroup_id_x 1")
        out.append(".end_amdhsa_kernel")
    open(path, "w").write("\n".join(out) + "\n")


if __name__ == "__main__":
    emit(sys.argv[1] if len(sys.argv) > 1 else f"cdna_kernels/{NAME}.s")
```

```python
WOL, WOL_LD = 0, 144
MEML, MEML_LD = 92160, 1296
QL, QL_LD = 112896, 272
KL = 117248
VL, VL_LD = 130304, 80
OL, OL_LD = 135424, 144
RED = 137728
LDS_BYTES = 139776
NCH, NRED = 64, 80
SPIN_MAX = 1 << 21
import os
INSTR = int(os.environ.get('INSTR', '0'))
CP = int(os.environ.get('CP', '4'))
RP = int(os.environ.get('RP', '4'))
CS = int(os.environ.get('CS', '0'))
RS = int(os.environ.get('RS', '0'))
NREP = int(os.environ.get('NREP', '8'))
REP_LD = 0x5000
LDF = os.environ.get('LDF', 'sc1').replace('_', ' ')
STF = os.environ.get('STF', 'sc1').replace('_', ' ')
D1 = int(os.environ.get('D1', '1'))
D2 = int(os.environ.get('D2', '1'))


def stamp(a, i, stepreg="s19", step=20):
    if not INSTR:
        return
    lb = a.new_label("st")
    a(f"s_cmp_eq_u32 {stepreg}, {step}")
    a(f"s_cbranch_scc0 {lb}")
    a(f"s_memtime s[{60+2*i}:{61+2*i}]")
    a("s_waitcnt lgkmcnt(0)")
    a.label(lb)


def rstamp(a, i, stepreg="s19", step=20, wait=False):
    if INSTR < 2:
        return
    lb = a.new_label("rt")
    a(f"s_cmp_eq_u32 {stepreg}, {step}")
    a(f"s_cbranch_scc0 {lb}")
    if wait:
        a("s_waitcnt vmcnt(0)")
    a("s_memrealtime s[80:81]")
    a("s_waitcnt lgkmcnt(0)")
    a(f"s_mov_b32 s{84+i}, s80")
    a.label(lb)


def dump_rt(a, G):
    if INSTR < 2:
        return
    a("s_lshl_b32 s28, s2, 2")
    a("s_add_u32 s28, s28, s18")
    a("s_lshl_b32 s28, s28, 5")
    a("s_add_u32 s28, s28, 0x9000000")
    a("v_mov_b32 v1, s28")
    for i in range(4):
        a(f"v_mov_b32 v2, s{84+i}")
        a(f"buffer_store_dword v2, v1, s[8:11], 0 offen offset:{4*i}")
    a("s_waitcnt vmcnt(0)")


def dump_stamps(a, G, wg, base, n, extra):
    if not INSTR:
        return
    lb = a.new_label("ds")
    a(f"s_cmp_eq_u32 s2, {wg}")
    a(f"s_cbranch_scc0 {lb}")
    a("s_cmp_eq_u32 s18, 0")
    a(f"s_cbranch_scc0 {lb}")
    a(f"s_load_dwordx2 s[4:5], s[0:1], {G.ARG['dbg']}")
    a("s_waitcnt lgkmcnt(0)")
    G.srd(a, 12, 4, 256)
    a("v_mov_b32 v1, 0")
    for i in range(n):
        a(f"v_mov_b32 v2, s{60+2*i}")
        a(f"buffer_store_dword v2, v1, s[12:15], 0 offen offset:{base+4*i}")
    a(f"v_mov_b32 v2, {extra}")
    a(f"buffer_store_dword v2, v1, s[12:15], 0 offen offset:{base+4*n}")
    a("s_waitcnt vmcnt(0)")
    a.label(lb)


def wreg(tile, ks):
    if tile < 3:
        b = tile * 80 + ks * 4
        return f"a[{b}:{b+3}]"
    if tile == 3:
        if ks < 4:
            b = 240 + ks * 4
            return f"a[{b}:{b+3}]"
        b = 112 + (ks - 4) * 4
        return f"v[{b}:{b+3}]"
    b = 176 + ks * 4
    return f"v[{b}:{b+3}]"


def v_div(a, dst, src, d, maxv, G):
    m, sh = G.magic_div(d, maxv)
    a(f"s_mov_b32 s90, {m}")
    a(f"v_mul_lo_u32 {dst}, {src}, s90")
    a(f"v_lshrrev_b32 {dst}, {sh}, {dst}")


def xlane_reduce(a, op, x, t1, t2):
    a(f"v_mov_b32 {t1}, {x}")
    a(f"v_mov_b32 {t2}, {x}")
    a("s_nop 1")
    a(f"v_permlane16_swap_b32 {t1}, {t2}")
    a("s_nop 1")
    a(f"{op} {x}, {t1}, {t2}")
    a(f"v_mov_b32 {t1}, {x}")
    a(f"v_mov_b32 {t2}, {x}")
    a("s_nop 1")
    a(f"v_permlane32_swap_b32 {t1}, {t2}")
    a("s_nop 1")
    a(f"{op} {x}, {t1}, {t2}")


def round_bf16_pair(a, r0, r1, t):
    a(f"v_cvt_pk_bf16_f32 {t}, {r0}, {r1}")
    a(f"v_lshlrev_b32 {r0}, 16, {t}")
    a(f"v_and_b32 {r1}, 0xffff0000, {t}")


def gen_chain(a, G):
    label = "k2_chain_kernel"
    G.kernel_begin(a, label)
    a(f"""
    s_cmp_ge_u32 s2, {NCH + NRED}
    s_cbranch_scc1 .k2_work
    s_load_dwordx2 s[4:5], s[0:1], {G.ARG['ws']}
    s_load_dwordx2 s[6:7], s[0:1], {G.ARG['mem0']}
    v_lshrrev_b32 v1, 6, v0
    s_nop 1
    v_readfirstlane_b32 s18, v1
    v_and_b32 v1, 63, v0
    v_and_b32 v2, 15, v1
    v_lshrrev_b32 v3, 4, v1
    s_waitcnt lgkmcnt(0)
    """)
    G.srd(a, 8, 4, G.WS_BYTES)
    G.srd(a, 12, 6, G.ARG_BYTES['mem0'])
    a(f"""
    s_cmp_ge_u32 s2, {NCH}
    s_cbranch_scc1 .k2_reducer
    s_lshr_b32 s16, s2, 1
    s_and_b32 s17, s2, 1
    s_mov_b32 s22, 0x00ff00ff
    s_mov_b32 s23, 0x00ff00ff
    s_mov_b32 s24, 0xffffffff
    s_mov_b32 s25, 0
    s_mov_b32 s26, 0x07060302
    s_mov_b32 s51, 4096
    s_mov_b32 s52, 8192
    s_mov_b32 s53, 12288
    s_mov_b32 s54, 16384
    """)
    a("""
    s_lshl_b32 s28, s16, 7
    s_lshl_b32 s29, s18, 5
    s_add_u32 s28, s28, s29
    v_add_u32 v4, s28, v2
    v_mul_u32_u24 v4, 1280, v4
    v_lshlrev_b32 v5, 4, v3
    v_add_u32 v4, v4, v5
    """)
    a(f"v_add_u32 v4, {G.WS_WT}, v4")
    a(f"v_add_u32 v5, {16*1280}, v4")
    a(f"v_add_u32 v6, {4096*1280}, v4")
    a(f"v_add_u32 v7, {(4096+16)*1280}, v4")
    a("""
    s_lshl_b32 s28, s16, 7
    s_lshl_b32 s29, s17, 6
    s_add_u32 s28, s28, s29
    s_lshl_b32 s29, s18, 4
    s_add_u32 s28, s28, s29
    v_add_u32 v8, s28, v2
    v_mul_u32_u24 v8, 1280, v8
    v_lshlrev_b32 v9, 4, v3
    v_add_u32 v8, v8, v9
    """)
    a(f"v_add_u32 v8, {G.WS_WT + 8192*1280}, v8")
    for t in range(5):
        for ks in range(20):
            a(f"buffer_load_dwordx4 {wreg(t, ks)}, v{4+t}, s[8:11], 0 offen offset:{ks*64}")
        if t % 2 == 1:
            a("s_waitcnt vmcnt(0)")
    a(f"""
    v_lshrrev_b32 v4, 3, v0
    v_and_b32 v5, 7, v0
    v_lshlrev_b32 v6, 13, v4
    v_lshlrev_b32 v7, 4, v5
    v_add_u32 v6, v6, v7
    s_lshl_b32 s28, s16, 8
    s_lshl_b32 s29, s17, 7
    s_add_u32 s28, s28, s29
    s_add_u32 s28, s28, {G.WS_WOT}
    v_add_u32 v6, s28, v6
    v_mul_u32_u24 v8, {WOL_LD}, v4
    v_add_u32 v8, v8, v7
    s_mov_b32 s28, 0
    """)
    for n in range(20):
        a(f"buffer_load_dwordx4 v[{16+4*n}:{19+4*n}], v6, s[8:11], s28 offen")
        a("s_add_u32 s28, s28, 0x40000")
    a("s_waitcnt vmcnt(0)")
    for n in range(20):
        if n == 10:
            a(f"v_add_u32 v8, {10*32*WOL_LD}, v8")
        a(f"ds_write_b128 v8, v[{16+4*n}:{19+4*n}] offset:{WOL + (n%10)*32*WOL_LD}")
    a(f"""
    v_mov_b32 v16, 0
    v_mov_b32 v17, 0
    v_mov_b32 v18, 0
    v_mov_b32 v19, 0
    v_lshlrev_b32 v4, 4, v0
    v_add_u32 v4, {MEML + 8*MEML_LD}, v4
    ds_write_b128 v4, v[16:19]
    ds_write_b128 v4, v[16:19] offset:4096
    v_cmp_gt_u32 vcc, {648-512}, v0
    s_and_saveexec_b64 s[30:31], vcc
    ds_write_b128 v4, v[16:19] offset:8192
    s_mov_b64 exec, s[30:31]
    """)
    a(f"""
    v_mul_u32_u24 v4, {MEML_LD}, v2
    v_lshlrev_b32 v26, 4, v3
    v_add_u32 v4, v4, v26
    v_add_u32 v4, {MEML}, v4
    v_lshlrev_b32 v5, 4, v0
    s_and_b32 s28, s2, {NREP - 1}
    s_mul_i32 s28, s28, {REP_LD}
    s_add_u32 s28, s28, {G.WS_EX3}
    v_add_u32 v5, s28, v5
    """)
    for n in range(5):
        a(f"v_add_u32 v27, {n*256}, v0")
        v_div(a, "v28", "v27", 160, 1280, G)
        a("v_mul_u32_u24 v29, 160, v28")
        a("v_sub_u32 v29, v27, v29")
        a(f"v_mul_u32_u24 v28, {MEML_LD}, v28")
        a("v_lshlrev_b32 v29, 3, v29")
        a(f"v_add_u32 v{96+n}, v28, v29")
        a(f"v_add_u32 v{96+n}, {MEML}, v{96+n}")
    a(f"""
    v_lshrrev_b32 v27, 1, v0
    v_and_b32 v27, 7, v27
    v_mul_u32_u24 v27, {MEML_LD}, v27
    v_lshrrev_b32 v28, 4, v0
    v_lshlrev_b32 v28, 4, v28
    v_add_u32 v27, v27, v28
    v_and_b32 v28, 1, v0
    v_lshlrev_b32 v28, 3, v28
    v_add_u32 v27, v27, v28
    """)
    for n in range(5):
        a(f"v_add_u32 v{6+n}, {MEML + n*256}, v27")
    a(f"""
    v_mul_u32_u24 v27, {QL_LD}, v2
    v_lshlrev_b32 v28, 3, v3
    s_lshl_b32 s28, s18, 6
    v_add_u32 v29, v27, v28
    v_add_u32 v29, s28, v29
    v_add_u32 v11, {QL}, v29
    v_add_u32 v12, {KL + 32*QL_LD}, v29
    v_add_u32 v13, v27, v26
    v_add_u32 v14, {KL}, v13
    v_add_u32 v13, {QL}, v13
    s_lshl_b32 s28, s18, 4
    v_add_u32 v15, s28, v2
    v_mul_u32_u24 v15, {VL_LD}, v15
    v_add_u32 v15, v15, v28
    v_add_u32 v15, {VL}, v15
    v_mul_u32_u24 v27, {OL_LD}, v2
    s_lshl_b32 s28, s18, 5
    v_add_u32 v16, v27, v28
    v_add_u32 v16, s28, v16
    v_add_u32 v16, {OL}, v16
    v_add_u32 v17, v27, v26
    v_add_u32 v17, {OL}, v17
    s_mul_i32 s28, s18, 160
    v_add_u32 v18, s28, v2
    v_mul_u32_u24 v18, {WOL_LD}, v18
    v_add_u32 v18, v18, v26
    """)
    a(f"""
    v_lshrrev_b32 v27, 1, v3
    v_lshrrev_b32 v28, 3, v2
    v_lshlrev_b32 v28, 1, v28
    v_add_u32 v27, v27, v28
    s_mul_i32 s28, s18, 20
    v_add_u32 v27, s28, v27
    v_lshlrev_b32 v27, 6, v27
    v_add_u32 v27, s2, v27
    v_lshlrev_b32 v27, 8, v27
    v_and_b32 v28, 7, v2
    v_lshlrev_b32 v28, 5, v28
    v_add_u32 v27, v27, v28
    v_and_b32 v28, 1, v3
    v_lshlrev_b32 v28, 4, v28
    v_add_u32 v27, v27, v28
    v_add_u32 v19, {G.WS_EX2}, v27
    s_mov_b32 s27, 0xffffffc0
    """)
    a(f"""
    v_lshrrev_b32 v27, 4, v0
    v_and_b32 v28, 15, v0
    v_lshlrev_b32 v28, 4, v28
    v_lshlrev_b32 v20, 14, v27
    v_add_u32 v20, v20, v28
    s_lshl_b32 s28, s16, 8
    s_add_u32 s28, s28, {G.WS_QK + 8192}
    v_add_u32 v20, s28, v20
    v_mul_u32_u24 v21, {QL_LD}, v27
    v_add_u32 v21, v21, v28
    v_add_u32 v21, {KL}, v21
    v_lshrrev_b32 v27, 2, v0
    v_and_b32 v28, 3, v0
    v_lshlrev_b32 v28, 4, v28
    s_lshl_b32 s28, s16, 7
    s_lshl_b32 s29, s17, 6
    s_add_u32 s28, s28, s29
    v_add_u32 v22, s28, v27
    v_lshlrev_b32 v22, 12, v22
    v_add_u32 v22, v22, v28
    v_add_u32 v22, {G.WS_VT}, v22
    v_mul_u32_u24 v23, {VL_LD}, v27
    v_add_u32 v23, v23, v28
    v_add_u32 v23, {VL}, v23
    """)
    a(f"""
    s_lshl_b32 s28, s16, 3
    v_add_u32 v24, s28, v2
    v_lshlrev_b32 v24, 8, v24
    v_lshlrev_b32 v27, 3, v3
    v_add_u32 v24, v24, v27
    s_lshl_b32 s28, s18, 6
    s_add_u32 s28, s28, {G.WS_KM}
    v_add_u32 v24, s28, v24
    s_lshl_b32 s28, s16, 7
    s_lshl_b32 s29, s17, 6
    s_add_u32 s28, s28, s29
    s_lshl_b32 s29, s18, 4
    s_add_u32 s28, s28, s29
    v_add_u32 v25, s28, v2
    v_lshlrev_b32 v25, 4, v25
    v_add_u32 v25, v25, v27
    v_add_u32 v25, {G.WS_VMT}, v25
    """)
    a("v_lshlrev_b32 v27, 3, v0")
    for n in range(5):
        a(f"buffer_load_dwordx2 v[{68+2*n}:{69+2*n}], v27, s[12:15], {'0' if n < 2 else 's%d' % (50 + (n >> 1))} offen offset:{(n&1)*2048}")
    a("""
    s_mov_b32 s28, 0x40000
    buffer_load_dwordx4 v[28:31], v20, s[8:11], 0 offen
    buffer_load_dwordx4 v[32:35], v20, s[8:11], s28 offen
    buffer_load_dwordx4 v[36:39], v22, s[8:11], 0 offen
    s_waitcnt vmcnt(0)
    """)
    for n in range(5):
        a(f"ds_write_b64 v{96+n}, v[{68+2*n}:{69+2*n}]")
    a(f"""
    ds_write_b128 v21, v[28:31]
    ds_write_b128 v21, v[32:35] offset:{16*QL_LD}
    ds_write_b128 v23, v[36:39]
    s_mov_b32 s19, 0
    s_mov_b32 s40, 0x3fb8aa3b
    s_mov_b32 s41, 0x3db504f3
    """)
    a.label(".k2_step")
    a("""
    s_waitcnt lgkmcnt(0)
    s_barrier
    """)
    stamp(a, 0)
    a("""
    s_add_u32 s28, s19, 1
    s_min_u32 s28, s28, 63
    s_lshl_b32 s29, s28, 19
    s_add_u32 s30, s29, 0x40000
    s_lshl_b32 s31, s28, 6
    buffer_load_dwordx4 v[28:31], v20, s[8:11], s29 offen
    buffer_load_dwordx4 v[32:35], v20, s[8:11], s30 offen
    buffer_load_dwordx4 v[36:39], v22, s[8:11], s31 offen
    """)
    for ks in range(4):
        a(f"ds_read_b128 v[{60+4*ks}:{63+4*ks}], v4 offset:{ks*64}")
    for ks in range(20):
        b = 60 + 4 * (ks % 4)
        rem = min(3, 19 - ks)
        a(f"s_waitcnt lgkmcnt({rem})")
        for t in range(5):
            c = 40 + 4 * t
            cin = "0" if ks == 0 else f"v[{c}:{c+3}]"
            if t < 4:
                a(f"v_mfma_f32_16x16x32_bf16 v[{c}:{c+3}], {wreg(t, ks)}, v[{b}:{b+3}], {cin}")
            else:
                a(f"v_mfma_f32_16x16x32_bf16 v[{c}:{c+3}], v[{b}:{b+3}], {wreg(t, ks)}, {cin}")
        if ks + 4 < 20:
            a(f"ds_read_b128 v[{b}:{b+3}], v4 offset:{(ks+4)*64}")
    a("s_nop 7")
    a("s_nop 7")
    stamp(a, 1)
    for t in range(4):
        c = 40 + 4 * t
        a(f"v_cvt_pk_bf16_f32 v{60+2*t}, v{c}, v{c+1}")
        a(f"v_cvt_pk_bf16_f32 v{61+2*t}, v{c+2}, v{c+3}")
    a("v_cvt_pk_bf16_f32 v26, v56, v57")
    a("v_cvt_pk_bf16_f32 v27, v58, v59")
    a("""
    ds_write_b64 v11, v[60:61]
    ds_write_b64 v11, v[62:63] offset:32
    ds_write_b64 v12, v[64:65]
    ds_write_b64 v12, v[66:67] offset:32
    s_lshl_b32 s29, s19, 16
    s_waitcnt vmcnt(3)
    s_mov_b64 exec, s[24:25]
    buffer_store_dwordx2 v[26:27], v25, s[8:11], s29 offen
    s_mov_b64 exec, s[22:23]
    s_cmp_eq_u32 s17, 0
    s_cbranch_scc0 .k2_nokm
    buffer_store_dwordx2 v[64:65], v24, s[8:11], s29 offen
    buffer_store_dwordx2 v[66:67], v24, s[8:11], s29 offen offset:32
    """)
    a.label(".k2_nokm")
    a("""
    s_mov_b64 exec, -1
    s_cmp_eq_u32 s19, 63
    s_cbranch_scc1 .k2_fin
    s_waitcnt lgkmcnt(0)
    s_barrier
    """)
    stamp(a, 2)
    for ks in range(4):
        a(f"ds_read_b128 v[{60+4*ks}:{63+4*ks}], v13 offset:{ks*64}")
    for ks in range(4):
        a(f"ds_read_b128 v[{40+4*ks}:{43+4*ks}], v14 offset:{ks*64}")
    for ks in range(4):
        a(f"ds_read_b128 v[{76+4*ks}:{79+4*ks}], v14 offset:{16*QL_LD + ks*64}")
    a(f"ds_read_b64 v[92:93], v15")
    a(f"ds_read_b64 v[94:95], v15 offset:32")
    a("s_waitcnt lgkmcnt(6)")
    for ks in range(4):
        cin = "0" if ks == 0 else "v[100:103]"
        a(f"v_mfma_f32_16x16x32_bf16 v[100:103], v[{40+4*ks}:{43+4*ks}], v[{60+4*ks}:{63+4*ks}], {cin}")
    for ks in range(4):
        a(f"ds_read_b128 v[{40+4*ks}:{43+4*ks}], v14 offset:{32*QL_LD + ks*64}")
    a("s_waitcnt lgkmcnt(6)")
    for ks in range(4):
        cin = "0" if ks == 0 else "v[104:107]"
        a(f"v_mfma_f32_16x16x32_bf16 v[104:107], v[{76+4*ks}:{79+4*ks}], v[{60+4*ks}:{63+4*ks}], {cin}")
    a("s_waitcnt lgkmcnt(0)")
    for ks in range(4):
        cin = "0" if ks == 0 else "v[108:111]"
        a(f"v_mfma_f32_16x16x32_bf16 v[108:111], v[{40+4*ks}:{43+4*ks}], v[{60+4*ks}:{63+4*ks}], {cin}")
    a("s_nop 7")
    a("s_nop 7")
    for p in range(6):
        round_bf16_pair(a, f"v{100+2*p}", f"v{101+2*p}", "v40")
    for r in range(12):
        a(f"v_mul_f32 v{100+r}, s41, v{100+r}")
    for p in range(6):
        round_bf16_pair(a, f"v{100+2*p}", f"v{101+2*p}", "v40")
    a("v_mov_b32 v41, 0xf149f2ca")
    a("v_cmp_gt_u32 vcc, 2, v3")
    a("s_nop 1")
    for r in range(4):
        a(f"v_cndmask_b32 v{108+r}, v41, v{108+r}, vcc")
    a("v_max3_f32 v42, v100, v101, v102")
    for r in range(3, 11, 2):
        a(f"v_max3_f32 v42, v42, v{100+r}, v{101+r}")
    a("v_max_f32 v42, v42, v111")
    xlane_reduce(a, "v_max_f32", "v42", "v43", "v44")
    for r in range(12):
        a(f"v_sub_f32 v{100+r}, v{100+r}, v42")
    for r in range(12):
        a(f"v_mul_f32 v{100+r}, s40, v{100+r}")
    for r in range(12):
        a(f"v_exp_f32 v{100+r}, v{100+r}")
    a("s_nop 1")
    a("v_add_f32 v42, v100, v101")
    for r in range(2, 12):
        a(f"v_add_f32 v42, v42, v{100+r}")
    xlane_reduce(a, "v_add_f32", "v42", "v43", "v44")
    a("v_rcp_f32 v42, v42")
    a("s_nop 1")
    for r in range(12):
        a(f"v_mul_f32 v{100+r}, v{100+r}, v42")
    for p in range(6):
        a(f"v_cvt_pk_bf16_f32 v{44+p}, v{100+2*p}, v{101+2*p}")
    a("s_nop 1")
    a("v_mfma_f32_16x16x16_bf16 v[52:55], v[92:93], v[44:45], 0")
    a("v_mfma_f32_16x16x16_bf16 v[52:55], v[94:95], v[46:47], v[52:55]")
    a("v_mfma_f32_16x16x16_bf16 v[52:55], v[26:27], v[48:49], v[52:55]")
    for f in range(4):
        a(f"ds_read_b128 v[{76+4*f}:{79+4*f}], v18 offset:{(f>>1)*16*WOL_LD + (f&1)*64}")
    a("s_nop 7")
    a("s_nop 3")
    a("v_cvt_pk_bf16_f32 v56, v52, v53")
    a("v_cvt_pk_bf16_f32 v57, v54, v55")
    a("ds_write_b64 v16, v[56:57]")
    stamp(a, 3)
    a("s_waitcnt lgkmcnt(0)")
    a("s_barrier")
    stamp(a, 4)
    a(f"""
    s_waitcnt vmcnt(0)
    ds_write_b128 v21, v[28:31]
    ds_write_b128 v21, v[32:35] offset:{16*QL_LD}
    ds_write_b128 v23, v[36:39]
    ds_read_b128 v[68:71], v17
    ds_read_b128 v[72:75], v17 offset:64
    """)
    a("s_add_u32 s20, s19, 1")
    a("v_mov_b32 v108, s20")
    a("s_mov_b32 s28, 0")

    def e2_store(p):
        c = 28 + 8 * p
        for r in range(4):
            a(f"v_mov_b32_dpp v{c+r}, v{c+4+r} row_ror:8 row_mask:0xf bank_mask:0xc")
        for r in range(4):
            a(f"v_bfi_b32 v{c+r}, s27, v{c+r}, v108")
        a(f"buffer_store_dwordx4 v[{c}:{c+3}], v19, s[8:11], s28 offen {STF}")
        a("s_add_u32 s28, s28, 0x10000")

    for bt in range(5):
        cur = 76 + 16 * (bt & 1)
        nxt = 76 + 16 * ((bt + 1) & 1)
        if bt < 4:
            for f in range(4):
                a(f"ds_read_b128 v[{nxt+4*f}:{nxt+3+4*f}], v18 offset:{((bt+1)*2+(f>>1))*16*WOL_LD + (f&1)*64}")
            a("s_waitcnt lgkmcnt(4)")
        else:
            a("s_waitcnt lgkmcnt(0)")
        for tl in range(2):
            c = 28 + 4 * (bt * 2 + tl)
            a(f"v_mfma_f32_16x16x32_bf16 v[{c}:{c+3}], v[{cur+8*tl}:{cur+8*tl+3}], v[68:71], 0")
            a(f"v_mfma_f32_16x16x32_bf16 v[{c}:{c+3}], v[{cur+8*tl+4}:{cur+8*tl+7}], v[72:75], v[{c}:{c+3}]")
        if bt:
            e2_store(bt - 1)
    a("s_nop 7")
    a("s_nop 3")
    stamp(a, 5)
    rstamp(a, 0)
    e2_store(4)
    stamp(a, 6)
    rstamp(a, 1, wait=True)
    PB = 76
    a("s_mov_b32 s21, 0")
    a(f"v_mov_b32 v{PB}, 0")
    a(f"s_mov_b64 exec, {(1 << CP) - 1}")
    a.label(".k2_poll")
    a(f"buffer_load_dwordx4 v[{PB}:{PB+3}], v5, s[8:11], 0 offen {LDF}")
    a(f"s_waitcnt vmcnt({D1-1})")
    for r in range(4):
        a(f"v_xor_b32 v{40+r}, s20, v{PB+r}")
    a("v_or3_b32 v40, v40, v41, v42")
    a("v_or_b32 v40, v40, v43")
    a("v_and_b32 v40, 0xffff, v40")
    a("v_cmp_ne_u32 vcc, 0, v40")
    a("s_cbranch_vccz .k2_poll2")
    a("s_add_u32 s21, s21, 1")
    a(f"s_cmp_lt_u32 s21, {SPIN_MAX}")
    a("s_cbranch_scc1 .k2_poll")
    a("s_endpgm")
    a.label(".k2_poll2")
    rstamp(a, 3)
    a("s_mov_b64 exec, -1")
    for n in range(5):
        a(f"buffer_load_dwordx4 v[{PB+4*n}:{PB+3+4*n}], v5, s[8:11], {'0' if n == 0 else 's%d' % (50+n)} offen {LDF}")
    a("s_waitcnt vmcnt(0)")
    msk = [32, 34, 36, 38, 42]
    a.label(".k2_chk")
    for r in range(20):
        a(f"v_xor_b32 v{40+r}, s20, v{PB+r}")
    for n in range(5):
        a(f"v_or3_b32 v{40+4*n}, v{40+4*n}, v{41+4*n}, v{42+4*n}")
    for n in range(5):
        a(f"v_or_b32 v{40+4*n}, v{40+4*n}, v{43+4*n}")
    for n in range(5):
        a(f"v_and_b32 v{40+4*n}, 0xffff, v{40+4*n}")
    for n in range(5):
        a(f"v_cmp_ne_u32 s[{msk[n]}:{msk[n]+1}], 0, v{40+4*n}")
    a("s_nop 1")
    a(f"s_or_b64 s[28:29], s[{msk[0]}:{msk[0]+1}], s[{msk[1]}:{msk[1]+1}]")
    a(f"s_or_b64 s[30:31], s[{msk[2]}:{msk[2]+1}], s[{msk[3]}:{msk[3]+1}]")
    a(f"s_or_b64 s[28:29], s[28:29], s[{msk[4]}:{msk[4]+1}]")
    a("s_or_b64 s[28:29], s[28:29], s[30:31]")
    a("s_cbranch_scc0 .k2_got")
    for n in range(5):
        a(f"s_mov_b64 exec, s[{msk[n]}:{msk[n]+1}]")
        a(f"buffer_load_dwordx4 v[{PB+4*n}:{PB+3+4*n}], v5, s[8:11], {'0' if n == 0 else 's%d' % (50+n)} offen {LDF}")
    a("s_mov_b64 exec, -1")
    a(f"s_waitcnt vmcnt({5*(D2-1)})")
    a("s_add_u32 s21, s21, 1")
    a(f"s_cmp_lt_u32 s21, {SPIN_MAX}")
    a("s_cbranch_scc1 .k2_chk")
    a("s_endpgm")
    a.label(".k2_got")
    stamp(a, 7)
    rstamp(a, 2)
    if INSTR:
        a("s_cmp_eq_u32 s19, 20")
        a("s_cselect_b32 s59, s21, s59")
    for n in range(5):
        b = PB + 4 * n
        a(f"v_perm_b32 v{40+2*n}, v{b+1}, v{b}, s26")
        a(f"v_perm_b32 v{41+2*n}, v{b+3}, v{b+2}, s26")
        a(f"ds_write_b64 v{6+n}, v[{40+2*n}:{41+2*n}]")
    a("s_add_u32 s19, s19, 1")
    a("s_branch .k2_step")
    a.label(".k2_fin")
    a("s_waitcnt vmcnt(0)")
    dump_rt(a, G)
    dump_stamps(a, G, 0, 0, 8, "s59")
    a("s_endpgm")

    a.label(".k2_reducer")
    a(f"""
    s_sub_u32 s16, s2, {NCH}
    s_lshl_b32 s28, s16, 14
    s_add_u32 s28, s28, {G.WS_EX2}
    s_lshl_b32 s29, s18, 6
    s_add_u32 s28, s28, s29
    v_lshrrev_b32 v4, 2, v1
    v_lshlrev_b32 v4, 8, v4
    v_and_b32 v8, 3, v1
    v_lshlrev_b32 v5, 4, v8
    v_add_u32 v4, v4, v5
    v_add_u32 v4, s28, v4
    v_lshlrev_b32 v7, 4, v8
    s_lshl_b32 s29, s16, 8
    s_lshl_b32 s28, s18, 6
    s_add_u32 s29, s29, s28
    s_add_u32 s29, s29, {G.WS_EX3}
    v_add_u32 v7, s29, v7
    v_lshrrev_b32 v8, 2, v1
    v_mul_u32_u24 v8, {REP_LD}, v8
    v_add_u32 v7, v7, v8
    s_mov_b32 s24, {((1 << (4 * NREP)) - 1) & 0xffffffff}
    s_mov_b32 s25, {((1 << (4 * NREP)) - 1) >> 32}
    s_mov_b32 s20, 1
    s_mov_b32 s51, 4096
    s_mov_b32 s52, 8192
    s_mov_b32 s53, 12288
    """)
    a("v_mov_b32 v16, 0")
    a.label(".k2_rstep")
    stamp(a, 0, "s20", 21)
    a("s_mov_b32 s21, 0")
    a(f"s_mov_b64 exec, {(1 << RP) - 1}")
    a.label(".k2_rpoll")
    a(f"buffer_load_dwordx4 v[16:19], v4, s[8:11], 0 offen {LDF}")
    a(f"s_waitcnt vmcnt({D1-1})")
    for r in range(4):
        a(f"v_xor_b32 v{40+r}, s20, v{16+r}")
    a("v_or3_b32 v40, v40, v41, v42")
    a("v_or_b32 v40, v40, v43")
    a("v_and_b32 v40, 63, v40")
    a("v_cmp_ne_u32 vcc, 0, v40")
    a("s_cbranch_vccz .k2_rpoll2")
    a("s_add_u32 s21, s21, 1")
    a(f"s_cmp_lt_u32 s21, {SPIN_MAX}")
    a("s_cbranch_scc1 .k2_rpoll")
    a("s_endpgm")
    a.label(".k2_rpoll2")
    rstamp(a, 3, "s20", 21)
    a("s_mov_b64 exec, -1")
    for n in range(4):
        a(f"buffer_load_dwordx4 v[{16+4*n}:{19+4*n}], v4, s[8:11], {'0' if n == 0 else 's%d' % (50+n)} offen {LDF}")
    a("s_waitcnt vmcnt(0)")
    msk = [32, 34, 36, 38]
    a.label(".k2_rchk")
    for r in range(16):
        a(f"v_xor_b32 v{40+r}, s20, v{16+r}")
    for n in range(4):
        a(f"v_or3_b32 v{40+4*n}, v{40+4*n}, v{41+4*n}, v{42+4*n}")
    for n in range(4):
        a(f"v_or_b32 v{40+4*n}, v{40+4*n}, v{43+4*n}")
    for n in range(4):
        a(f"v_and_b32 v{40+4*n}, 63, v{40+4*n}")
    for n in range(4):
        a(f"v_cmp_ne_u32 s[{msk[n]}:{msk[n]+1}], 0, v{40+4*n}")
    a("s_nop 1")
    a(f"s_or_b64 s[28:29], s[{msk[0]}:{msk[0]+1}], s[{msk[1]}:{msk[1]+1}]")
    a(f"s_or_b64 s[30:31], s[{msk[2]}:{msk[2]+1}], s[{msk[3]}:{msk[3]+1}]")
    a("s_or_b64 s[28:29], s[28:29], s[30:31]")
    a("s_cbranch_scc0 .k2_rgot")
    for n in range(4):
        a(f"s_mov_b64 exec, s[{msk[n]}:{msk[n]+1}]")
        a(f"buffer_load_dwordx4 v[{16+4*n}:{19+4*n}], v4, s[8:11], {'0' if n == 0 else 's%d' % (50+n)} offen {LDF}")
    a("s_mov_b64 exec, -1")
    a(f"s_waitcnt vmcnt({4*(D2-1)})")
    a("s_add_u32 s21, s21, 1")
    a(f"s_cmp_lt_u32 s21, {SPIN_MAX}")
    a("s_cbranch_scc1 .k2_rchk")
    a("s_endpgm")
    a.label(".k2_rgot")
    stamp(a, 1, "s20", 21)
    rstamp(a, 0, "s20", 21)
    if INSTR:
        a("s_cmp_eq_u32 s20, 21")
        a("s_cselect_b32 s59, s21, s59")
    for r in range(4):
        a(f"v_add_f32 v{40+r}, v{16+r}, v{20+r}")
        a(f"v_add_f32 v{44+r}, v{24+r}, v{28+r}")
    for r in range(4):
        a(f"v_add_f32 v{40+r}, v{40+r}, v{44+r}")
    a("s_nop 1")
    for ror in (4, 8):
        for r in range(4):
            a(f"v_add_f32_dpp v{40+r}, v{40+r}, v{40+r} row_ror:{ror} row_mask:0xf bank_mask:0xf")
        a("s_nop 1")
    for sw in ("v_permlane16_swap_b32", "v_permlane32_swap_b32"):
        for r in range(4):
            a(f"v_mov_b32 v{44+r}, v{40+r}")
        a("s_nop 1")
        for r in range(4):
            a(f"{sw} v{40+r}, v{44+r}")
        a("s_nop 1")
        for r in range(4):
            a(f"v_add_f32 v{40+r}, v{40+r}, v{44+r}")
        a("s_nop 1")
    a(f"""
    v_cvt_pk_bf16_f32 v44, v40, v41
    v_cvt_pk_bf16_f32 v45, v42, v43
    v_lshlrev_b32 v40, 16, v44
    v_and_b32 v41, 0xffff0000, v44
    v_lshlrev_b32 v42, 16, v45
    v_and_b32 v43, 0xffff0000, v45
    v_or_b32 v40, s20, v40
    v_or_b32 v41, s20, v41
    v_or_b32 v42, s20, v42
    v_or_b32 v43, s20, v43
    s_mov_b64 exec, s[24:25]
    buffer_store_dwordx4 v[40:43], v7, s[8:11], 0 offen {STF}
    s_mov_b64 exec, -1
    """)
    a.label(".k2_rnext")
    stamp(a, 2, "s20", 21)
    rstamp(a, 1, "s20", 21)
    rstamp(a, 2, "s20", 21, wait=True)
    a("""
    s_add_u32 s20, s20, 1
    s_cmp_le_u32 s20, 63
    s_cbranch_scc1 .k2_rstep
    s_waitcnt vmcnt(0)
    """)
    dump_rt(a, G)
    dump_stamps(a, G, NCH, 64, 3, "s59")
    a("s_endpgm")
    a.label(".k2_work")
    import gen_gemm2
    nw, lds, nv = gen_gemm2.gemm_section(a, G, "k2w", [
        dict(A=('ws', G.WS_WT), lda=1280, B=('A_x', 0), ldb=1280, K=640, O=('ws', G.WS_QK), ldo=16384,
             split='m', xm=2, xn=16, NB=5),
        dict(A=('ws', G.WS_BWT), lda=1280, B=('B_x', 0), ldb=1280, K=640, O=('ws', G.WS_BQ), ldo=3840,
             split='m', xm=1, xn=16, NB=5, mlimit=1920),
    ], 256, 128, 2, 2, wg0=NCH + NRED)
    assert lds <= LDS_BYTES
    G.KERNELS.append((label, 256, 256))
    G.LAUNCHES.append((label, NCH + NRED + nw, 256, LDS_BYTES))


def gen_all(a, G):
    gen_chain(a, G)


def gen_k3(a, G):
    label = "k3_attn_kernel"
    NA, NB = 512, 256
    G.kernel_begin(a, label)
    a(f"""
    s_cmp_ge_u32 s2, {NA + NB}
    s_cbranch_scc1 .k3_end
    s_load_dwordx2 s[4:5], s[0:1], {G.ARG['ws']}
    v_lshrrev_b32 v1, 6, v0
    s_nop 1
    v_readfirstlane_b32 s18, v1
    v_and_b32 v1, 63, v0
    s_waitcnt lgkmcnt(0)
    """)
    G.srd(a, 8, 4, G.WS_BYTES)
    a(f"""
    s_mov_b32 s40, 0x3fb8aa3b
    s_cmp_ge_u32 s2, {NA}
    s_cbranch_scc1 .k3_b
    s_lshl_b32 s16, s2, 2
    s_add_u32 s16, s16, s18
    s_and_b32 s17, s16, 31
    s_lshr_b32 s16, s16, 5
    s_mov_b32 s41, 0x3db504f3
    v_and_b32 v2, 31, v1
    v_lshrrev_b32 v3, 5, v1
    """)
    a(f"""
    s_lshl_b32 s28, s16, 19
    s_lshl_b32 s29, s17, 8
    s_add_u32 s28, s28, s29
    s_add_u32 s28, s28, {G.WS_QK}
    v_lshlrev_b32 v4, 14, v2
    v_lshlrev_b32 v5, 5, v3
    v_add_u32 v4, v4, v5
    v_add_u32 v4, s28, v4
    v_add_u32 v6, 0x2000, v4
    s_lshl_b32 s28, s16, 16
    s_lshl_b32 s29, s17, 11
    s_add_u32 s28, s28, s29
    s_add_u32 s28, s28, {G.WS_KM}
    v_and_b32 v7, 7, v2
    v_lshlrev_b32 v7, 8, v7
    v_add_u32 v7, v7, v5
    v_add_u32 v7, s28, v7
    """)
    for kb in range(4):
        for hf in range(2):
            o = kb * 64 + hf * 16
            i = kb * 2 + hf
            a(f"buffer_load_dwordx4 v[{16+4*i}:{19+4*i}], v4, s[8:11], 0 offen offset:{o}")
            a(f"buffer_load_dwordx4 v[{48+4*i}:{51+4*i}], v6, s[8:11], 0 offen offset:{o}")
            a(f"buffer_load_dwordx4 v[{80+4*i}:{83+4*i}], v7, s[8:11], 0 offen offset:{o}")
    a(f"""
    s_lshl_b32 s28, s17, 19
    s_lshl_b32 s29, s16, 6
    s_add_u32 s28, s28, s29
    s_add_u32 s28, s28, {G.WS_VT}
    v_lshlrev_b32 v8, 12, v2
    v_lshlrev_b32 v5, 3, v3
    v_add_u32 v8, v8, v5
    v_add_u32 v8, s28, v8
    s_lshl_b32 s28, s16, 16
    s_lshl_b32 s29, s17, 11
    s_add_u32 s28, s28, s29
    s_add_u32 s28, s28, {G.WS_VMT}
    v_lshlrev_b32 v9, 4, v2
    v_add_u32 v9, v9, v5
    v_add_u32 v9, s28, v9
    s_mov_b32 s28, 0
    """)
    for et in range(4):
        b = 144 + 12 * et
        a(f"buffer_load_dwordx2 v[{b}:{b+1}], v8, s[8:11], s28 offen")
        a(f"buffer_load_dwordx2 v[{b+2}:{b+3}], v8, s[8:11], s28 offen offset:16")
        a(f"buffer_load_dwordx2 v[{b+4}:{b+5}], v8, s[8:11], s28 offen offset:32")
        a(f"buffer_load_dwordx2 v[{b+6}:{b+7}], v8, s[8:11], s28 offen offset:48")
        a(f"buffer_load_dwordx2 v[{b+8}:{b+9}], v9, s[8:11], 0 offen offset:{et*512}")
        a(f"v_mov_b32 v{b+10}, 0")
        a(f"v_mov_b32 v{b+11}, 0")
        a("s_add_u32 s28, s28, 0x20000")
    a("s_waitcnt vmcnt(20)")
    for i in range(8):
        cin = "0" if i == 0 else "v[112:127]"
        a(f"v_mfma_f32_32x32x16_bf16 v[112:127], v[{48+4*i}:{51+4*i}], v[{16+4*i}:{19+4*i}], {cin}")
    for i in range(8):
        cin = "0" if i == 0 else "v[128:143]"
        a(f"v_mfma_f32_32x32x16_bf16 v[128:143], v[{80+4*i}:{83+4*i}], v[{16+4*i}:{19+4*i}], {cin}")
    a("s_nop 15")
    a("s_nop 7")
    S = list(range(112, 132))
    for p in range(10):
        round_bf16_pair(a, f"v{S[2*p]}", f"v{S[2*p+1]}", "v16")
    for r in S:
        a(f"v_mul_f32 v{r}, s41, v{r}")
    for p in range(10):
        round_bf16_pair(a, f"v{S[2*p]}", f"v{S[2*p+1]}", "v16")
    a("v_mov_b32 v17, 0xf149f2ca")
    a("v_lshlrev_b32 v18, 2, v3")
    a("v_sub_u32 v18, v2, v18")
    for r in range(16):
        k0 = (r & 3) + 8 * (r >> 2)
        a(f"v_cmp_le_i32 vcc, {k0}, v18")
        a("s_nop 1")
        a(f"v_cndmask_b32 v{112+r}, v17, v{112+r}, vcc")
    a("v_max3_f32 v19, v112, v113, v114")
    for r in range(115, 131, 2):
        a(f"v_max3_f32 v19, v19, v{r}, v{r+1}")
    a("v_max_f32 v19, v19, v131")

    def x32(op, x):
        a(f"v_mov_b32 v20, {x}")
        a(f"v_mov_b32 v21, {x}")
        a("s_nop 1")
        a("v_permlane32_swap_b32 v20, v21")
        a("s_nop 1")
        a(f"{op} {x}, v20, v21")
    x32("v_max_f32", "v19")
    for r in S:
        a(f"v_sub_f32 v{r}, v{r}, v19")
    for r in S:
        a(f"v_mul_f32 v{r}, s40, v{r}")
    for r in S:
        a(f"v_exp_f32 v{r}, v{r}")
    a("s_nop 1")
    a("v_add_f32 v19, v112, v113")
    for r in S[2:]:
        a(f"v_add_f32 v19, v19, v{r}")
    x32("v_add_f32", "v19")
    a("v_rcp_f32 v19, v19")
    a("s_nop 1")
    for r in S:
        a(f"v_mul_f32 v{r}, v{r}, v19")
    for p in range(10):
        a(f"v_cvt_pk_bf16_f32 v{24+p}, v{S[2*p]}, v{S[2*p+1]}")
    a("v_mov_b32 v34, 0")
    a("v_mov_b32 v35, 0")
    a("s_waitcnt vmcnt(0)")
    a("s_nop 1")
    for et in range(4):
        b = 144 + 12 * et
        c = 48 + 16 * et
        a(f"v_mfma_f32_32x32x16_bf16 v[{c}:{c+15}], v[{b}:{b+3}], v[24:27], 0")
        a(f"v_mfma_f32_32x32x16_bf16 v[{c}:{c+15}], v[{b+4}:{b+7}], v[28:31], v[{c}:{c+15}]")
        a(f"v_mfma_f32_32x32x16_bf16 v[{c}:{c+15}], v[{b+8}:{b+11}], v[32:35], v[{c}:{c+15}]")
    a(f"""
    s_lshl_b32 s28, s16, 18
    s_lshl_b32 s29, s17, 8
    s_add_u32 s28, s28, s29
    s_add_u32 s28, s28, {G.WS_OA}
    v_lshlrev_b32 v4, 13, v2
    v_lshlrev_b32 v5, 4, v3
    v_add_u32 v4, v4, v5
    v_add_u32 v4, s28, v4
    s_nop 15
    s_nop 7
    """)
    for et in range(4):
        c = 48 + 16 * et
        p = 16 + 8 * (et & 1)
        for q in range(8):
            a(f"v_cvt_pk_bf16_f32 v{p+q}, v{c+2*q}, v{c+2*q+1}")
        a("s_nop 1")
        for pr in range(2):
            for w in range(2):
                a(f"v_permlane32_swap_b32 v{p+4*pr+w}, v{p+4*pr+2+w}")
        a("s_nop 1")
        a(f"buffer_store_dwordx4 v[{p}:{p+3}], v4, s[8:11], 0 offen offset:{et*64}")
        a(f"buffer_store_dwordx4 v[{p+4}:{p+7}], v4, s[8:11], 0 offen offset:{et*64+32}")
    a("s_waitcnt vmcnt(0)")
    a("s_endpgm")

    a.label(".k3_b")
    a(f"""
    s_sub_u32 s16, s2, {NA}
    s_lshl_b32 s16, s16, 3
    v_lshrrev_b32 v2, 5, v0
    v_add_u32 v2, s16, v2
    v_and_b32 v3, 31, v0
    v_mul_u32_u24 v3, 40, v3
    s_mov_b32 s41, 0x3e64f92e
    s_movk_i32 s28, 3840
    """)
    a("v_mul_lo_u32 v4, v2, s28")
    a("v_add_u32 v4, v4, v3")
    a(f"v_add_u32 v4, {G.WS_BQ}, v4")
    a("buffer_load_dwordx4 v[16:19], v4, s[8:11], 0 offen")
    a("buffer_load_dwordx4 v[20:23], v4, s[8:11], 0 offen offset:16")
    a("buffer_load_dwordx2 v[24:25], v4, s[8:11], 0 offen offset:32")
    for w in range(8):
        a(f"v_subrev_u32 v5, {2*w}, v2")
        a("v_max_i32 v5, 0, v5")
        a("v_mul_lo_u32 v5, v5, s28")
        a("v_add_u32 v5, v5, v3")
        a(f"v_add_u32 v5, {G.WS_BQ}, v5")
        kb, vb = 28 + 12 * w, 128 + 12 * w
        a(f"buffer_load_dwordx4 v[{kb}:{kb+3}], v5, s[8:11], 0 offen offset:1280")
        a(f"buffer_load_dwordx4 v[{kb+4}:{kb+7}], v5, s[8:11], 0 offen offset:1296")
        a(f"buffer_load_dwordx2 v[{kb+8}:{kb+9}], v5, s[8:11], 0 offen offset:1312")
        a(f"buffer_load_dwordx4 v[{vb}:{vb+3}], v5, s[8:11], 0 offen offset:2560")
        a(f"buffer_load_dwordx4 v[{vb+4}:{vb+7}], v5, s[8:11], 0 offen offset:2576")
        a(f"buffer_load_dwordx2 v[{vb+8}:{vb+9}], v5, s[8:11], 0 offen offset:2592")
    a("s_waitcnt vmcnt(0)")
    for w in range(8):
        kb = 28 + 12 * w
        a(f"v_mov_b32 v{224+w}, 0")
        for d in range(10):
            a(f"v_dot2_f32_bf16 v{224+w}, v{16+d}, v{kb+d}, v{224+w}")
    for p in range(4):
        round_bf16_pair(a, f"v{224+2*p}", f"v{225+2*p}", "v6")
    for w in range(8):
        a(f"v_mul_f32 v{224+w}, s41, v{224+w}")
    for p in range(4):
        round_bf16_pair(a, f"v{224+2*p}", f"v{225+2*p}", "v6")
    a("v_mov_b32 v7, 0xf149f2ca")
    for w in range(1, 8):
        a(f"v_cmp_le_u32 vcc, {2*w}, v2")
        a("s_nop 1")
        a(f"v_cndmask_b32 v{224+w}, v7, v{224+w}, vcc")
    a("v_max3_f32 v8, v224, v225, v226")
    a("v_max3_f32 v8, v8, v227, v228")
    a("v_max3_f32 v8, v8, v229, v230")
    a("v_max_f32 v8, v8, v231")
    for w in range(8):
        a(f"v_sub_f32 v{224+w}, v{224+w}, v8")
    for w in range(8):
        a(f"v_mul_f32 v{224+w}, s40, v{224+w}")
    for w in range(8):
        a(f"v_exp_f32 v{224+w}, v{224+w}")
    a("s_nop 1")
    a("v_add_f32 v8, v224, v225")
    for w in range(2, 8):
        a(f"v_add_f32 v8, v8, v{224+w}")
    a("v_rcp_f32 v8, v8")
    a("s_nop 1")
    for w in range(8):
        a(f"v_mul_f32 v{224+w}, v{224+w}, v8")
    for p in range(4):
        round_bf16_pair(a, f"v{224+2*p}", f"v{225+2*p}", "v6")
    for w in range(8):
        vb = 128 + 12 * w
        for d in range(10):
            a(f"v_lshlrev_b32 v6, 16, v{vb+d}")
            a(f"v_and_b32 v7, 0xffff0000, v{vb+d}")
            if w == 0:
                a(f"v_mul_f32 v{232+2*d}, v224, v6")
                a(f"v_mul_f32 v{233+2*d}, v224, v7")
            else:
                a(f"v_fma_f32 v{232+2*d}, v{224+w}, v6, v{232+2*d}")
                a(f"v_fma_f32 v{233+2*d}, v{224+w}, v7, v{233+2*d}")
    for d in range(10):
        a(f"v_cvt_pk_bf16_f32 v{16+d}, v{232+2*d}, v{233+2*d}")
    a(f"""
    v_mul_u32_u24 v4, 1280, v2
    v_add_u32 v4, v4, v3
    v_add_u32 v4, {G.WS_OB}, v4
    buffer_store_dwordx4 v[16:19], v4, s[8:11], 0 offen
    buffer_store_dwordx4 v[20:23], v4, s[8:11], 0 offen offset:16
    buffer_store_dwordx2 v[24:25], v4, s[8:11], 0 offen offset:32
    s_waitcnt vmcnt(0)
    """)
    a.label(".k3_end")
    a("s_endpgm")
    G.KERNELS.append((label, 256, 0))
    G.LAUNCHES.append((label, NA + NB, 256, 0))


def gen_all(a, G):
    gen_chain(a, G)
    gen_k3(a, G)
```
